```python
import torch

def _softmax(x, axis=-1):
    return torch.softmax(x, dim=axis)
def _gelu(x):
    return torch.nn.functional.gelu(x, approximate="tanh")
def _silu(x):
    return torch.nn.functional.silu(x)
def _sigmoid(x):
    return torch.sigmoid(x)
def _layernorm(x, axis=-1, eps=1e-5):
    m = x.mean(dim=axis, keepdim=True)
    v = x.var(dim=axis, keepdim=True, unbiased=False)
    return (x - m) / torch.sqrt(v + eps)
def _scatter_add(tgt, idx, src, axis=0):
    return tgt.clone().index_add_(axis, idx, src)
def _segment_sum(src, seg, n):
    out = torch.zeros((n,) + src.shape[1:], dtype=src.dtype)
    return out.index_add_(0, seg, src)
def _pad(x, pw):
    flat = tuple(v for pair in reversed(pw) for v in pair)
    return torch.nn.functional.pad(x, flat)

kernel_name = 'gated_mix__ssm_conv_h3__glu_gated_bilinear__prompt'

def setup_inputs():

    _w = (lambda a: (lambda t: t.to(torch.bfloat16) if t.is_floating_point() else t)(torch.as_tensor(a)))
    def _A_setup():
        B, S, D = 1, 2048, 512
        ks = 4
        return {
            "q": _w((lambda *s: torch.randn(*s, dtype=torch.bfloat16) * 0.05)(B, S, D)),
            "k": _w((lambda *s: torch.randn(*s, dtype=torch.bfloat16) * 0.05)(B, S, D)),
            "v": _w((lambda *s: torch.randn(*s, dtype=torch.bfloat16) * 0.05)(B, S, D)),
            "shift_k": _w((lambda *s: torch.randn(*s, dtype=torch.bfloat16) * 0.05)(D, ks) * 0.5),
            "ssm_k": _w((lambda *s: torch.randn(*s, dtype=torch.bfloat16) * 0.05)(D, S) * (1.0 / S ** 0.5)),
            "ssm_D": _w((lambda *s: torch.randn(*s, dtype=torch.bfloat16) * 0.05)(D)),
        }
    _A_in = _A_setup()

    def _B_setup():
        B, S, D, F = 1, 2048, 512, 1792
        return {
            "x": _w((lambda *s: torch.randn(*s, dtype=torch.bfloat16) * 0.05)(B, S, D)),
            "w_gate": _w((lambda *s: torch.randn(*s, dtype=torch.bfloat16) * 0.1)(D, F) * (D ** -0.5)),
            "w_up": _w((lambda *s: torch.randn(*s, dtype=torch.bfloat16) * 0.1)(D, F) * (D ** -0.5)),
            "w_down": _w((lambda *s: torch.randn(*s, dtype=torch.bfloat16) * 0.1)(F, D) * (F ** -0.5)),
        }
    _B_in = _B_setup()

    return {
        "A_q": _A_in["q"],
        "A_k": _A_in["k"],
        "A_v": _A_in["v"],
        "A_shift_k": _A_in["shift_k"],
        "A_ssm_k": _A_in["ssm_k"],
        "A_ssm_D": _A_in["ssm_D"],
        "B_x": _B_in["x"],
        "B_w_gate": _B_in["w_gate"],
        "B_w_up": _B_in["w_up"],
        "B_w_down": _B_in["w_down"],
        "gate_w": _w((lambda *s: torch.randn(*s, dtype=torch.bfloat16) * 0.05)(512) * 16.0),
    }

def reference(A_q, A_k, A_v, A_shift_k, A_ssm_k, A_ssm_D, B_x, B_w_gate, B_w_up, B_w_down, gate_w):
    def _A_ref(q, k, v, shift_k, ssm_k, ssm_D):
        B, S, D = q.shape
        ks = shift_k.shape[-1]
        k_pad = _pad(k, ((0, 0), (ks - 1, 0), (0, 0)))
        k_shift = torch.zeros_like(k)
        for t in range(ks):
            k_shift = k_shift + k_pad[:, t:t + S, :] * shift_k[:, ks - 1 - t][None, None, :]
        kv = k_shift * v
        L = 2 * S
        kv_pad = _pad(kv, ((0, 0), (0, S), (0, 0)))
        kf_pad = _pad(ssm_k, ((0, 0), (0, S)))
        kv_f = (lambda x, axes=(-2,-1): torch.fft.rfft2(x.float(), dim=axes))(kv_pad[:, None, :, :], axes=(1, 2))
        kf_f = (lambda x, axes=(-2,-1): torch.fft.rfft2(x.float(), dim=axes))(kf_pad[:, None, :], axes=(1, 2))
        kf_f = (lambda x, *d: x.permute(*d))(kf_f, 1, 2, 0)
        y_f = kv_f * kf_f[None, :, :, :]
        y = (lambda x, s, axes=(-2,-1): torch.fft.irfft2(x, s=s, dim=axes).to(torch.bfloat16))(y_f, (1, L), axes=(1, 2))[:, 0, :S, :]
        y = y + kv * ssm_D[None, None, :]
        return q * y

    def _B_ref(x, w_gate, w_up, w_down):
        g = torch.einsum("bsd,df->bsf", x, w_gate)
        u = torch.einsum("bsd,df->bsf", x, w_up)
        h = g * u
        return torch.einsum("bsf,fd->bsd", h, w_down)

    x = A_q
    g = _sigmoid((x * gate_w).sum(-1, keepdims=True))
    a = _A_ref(x, A_k, A_v, A_shift_k, A_ssm_k, A_ssm_D)
    b = _B_ref(x, B_w_gate, B_w_up, B_w_down)
    return g * a + (1 - g) * b
```

```python
class Asm:
    def __init__(self):
        self.lines = []
        self.nlabel = 0
    def __call__(self, s):
        for l in s.strip("\n").split("\n"):
            self.lines.append("    " + l.strip() if not l.strip().endswith(":") else l.strip())
    def label(self, base="L"):
        self.nlabel += 1
        return f"{base}_{self.nlabel}"
    def text(self):
        return "\n".join(self.lines) + "\n"

KNAME = "gated_mix__ssm_conv_h3__glu_gated_bilinear__prompt_kernel"

def wrap(body, grid, block, lds, vgpr=256, sgpr=102, accum=256, name=KNAME, header=""):
    return f"""{header}; @launch grid=({grid},1,1) block=({block},1,1) lds={lds}
.amdgcn_target "amdgcn-amd-amdhsa--gfx950"
.text
.globl {name}
.p2align 8
.type {name},@function
{name}:
{body}
.section .rodata,"a"
.p2align 6
.amdhsa_kernel {name}
  .amdhsa_next_free_vgpr {vgpr}
  .amdhsa_next_free_sgpr {sgpr}
  .amdhsa_accum_offset {accum}
  .amdhsa_group_segment_fixed_size 0
  .amdhsa_kernarg_size 112
  .amdhsa_user_sgpr_count 2
  .amdhsa_user_sgpr_kernarg_segment_ptr 1
  .amdhsa_system_sgpr_workgroup_id_x 1
.end_amdhsa_kernel
"""
```

```python
import sys
from asmlib import *

IMG = 16896
WG_OFF, WU_OFF, X_OFF, STAGE = 0, IMG, 2*IMG, 3*IMG
HL = 3*STAGE
P1L = 2*STAGE
KL, VL, WDL, OUTL = P1L, P1L+9216, P1L+9216+8192, P1L+9216+16384
UL, PL, XL = 0, 20480, 65536
F1, F2, F3, GATE, STAMP = 0x0, 0x1000, 0x4000, 0x8000, 0x20000
KVT, Y2, WDP, HWS = 0x100000, 0x400000, 0x800000, 0x1000000
SPIN_LIMIT = 20000

HEADER = open("gated_mix__ssm_conv_h3__glu_gated_bilinear__prompt.s.ref").read().split("; @launch")[0]

class VM:
    def __init__(self, a): self.a = a; self.ops = []
    def issue(self, text, tag): self.a(text); self.ops.append(tag)
    def note(self, tag): self.ops.append(tag)
    def n_after(self, tag):
        idx = [i for i, t in enumerate(self.ops) if t == tag]
        if not idx: return None
        return len(self.ops) - 1 - idx[-1]
    def wait(self, tag):
        n = self.n_after(tag)
        if n is None: return
        assert n <= 63, n
        self.a(f"s_waitcnt vmcnt({n})")
        self.ops = self.ops[len(self.ops)-n:] if n else []
    def wait_all(self):
        self.a("s_waitcnt vmcnt(0)"); self.ops = []

def gen(stamps=False):
    a = Asm(); vm = VM(a)
    nst = [0]
    def stamp():
        if stamps:
            k = 76 + 2*nst[0]; nst[0] += 1
            assert k <= 98
            a(f"s_memrealtime s[{k}:{k+1}]")
    def srd_tail(r, nbytes):
        a(f"s_mov_b32 s{r+2}, {nbytes}\ns_mov_b32 s{r+3}, 0x20000")
    def poll(voff, tmp, name):
        a(f"s_mov_b32 s56, 0")
        a(f"L_poll_{name}:")
        a(f"buffer_load_dwordx2 v[{tmp}:{tmp+1}], v{voff}, s[40:43], 0 offen sc1")
        a("s_waitcnt vmcnt(0)")
        a(f"v_cmp_ne_u64 vcc, s[54:55], v[{tmp}:{tmp+1}]")
        a("s_add_u32 s56, s56, 1")
        a("s_cmp_eq_u64 vcc, 0")
        a(f"s_cbranch_scc1 L_pok_{name}")
        a(f"s_cmp_lt_u32 s56, {SPIN_LIMIT}")
        a(f"s_cbranch_scc0 L_pok_{name}")
        a("s_sleep 1")
        a(f"s_branch L_poll_{name}")
        a(f"L_pok_{name}:")
        vm.ops = []
    def flag_store(soff_reg, tag):
        a(f"v_mov_b32 v2, s54\nv_mov_b32 v3, s55\nv_mov_b32 v4, {soff_reg}")
        a("s_mov_b64 exec, 1")
        vm.issue("buffer_store_dwordx2 v[2:3], v4, s[40:43], 0 offen sc1", tag)
        a("s_mov_b64 exec, -1")

    a(f"""
    s_cmp_ge_u32 s2, 256
    s_cbranch_scc1 L_end
    s_load_dwordx2 s[8:9], s[0:1], 0
    s_load_dwordx2 s[12:13], s[0:1], 8
    s_load_dwordx2 s[16:17], s[0:1], 16
    s_load_dwordx2 s[48:49], s[0:1], 24
    s_load_dwordx2 s[20:21], s[0:1], 32
    s_load_dwordx2 s[50:51], s[0:1], 40
    s_load_dwordx2 s[24:25], s[0:1], 56
    s_load_dwordx2 s[28:29], s[0:1], 64
    s_load_dwordx2 s[32:33], s[0:1], 72
    s_load_dwordx2 s[52:53], s[0:1], 80
    s_load_dwordx2 s[36:37], s[0:1], 88
    s_load_dwordx2 s[44:45], s[0:1], 96
    s_load_dwordx2 s[40:41], s[0:1], 104
    s_memrealtime s[54:55]
    """)
    stamp()
    for r, n in ((8, 0x200000), (12, 0x200000), (16, 0x200000), (20, 0x200000), (24, 512*1792*2), (28, 512*1792*2),
                 (32, 1792*512*2), (36, 0x200000), (40, 0x10000000), (44, 256)):
        srd_tail(r, n)
    a(f"""
    v_lshrrev_b32 v2, 6, v0
    v_and_b32 v1, 63, v0
    s_and_b32 s4, s2, 7             ; x
    v_readfirstlane_b32 s3, v2
    s_lshr_b32 s5, s2, 3            ; r
    s_lshr_b32 s6, s4, 1
    s_lshl_b32 s6, s6, 2
    s_and_b32 s56, s5, 3
    s_add_u32 s6, s6, s56           ; mt
    s_and_b32 s7, s4, 1
    s_mul_i32 s7, s7, 7
    s_lshr_b32 s56, s5, 2
    s_add_u32 s7, s7, s56           ; j
    v_lshlrev_b32 v10, 4, v1        ; lane*16
    v_lshrrev_b32 v2, 3, v1
    v_and_b32 v3, 7, v1
    v_lshlrev_b32 v2, 10, v2
    v_lshl_add_u32 v11, v3, 4, v2   ; (l>>3)*1024 + (l&7)*16
    s_lshl_b32 s56, s5, 16          ; 64*r*1024
    s_lshl_b32 s57, s3, 13          ; 8*w*1024
    s_add_u32 s56, s56, s57
    s_lshl_b32 s57, s4, 7
    s_add_u32 s56, s56, s57
    v_add_u32 v28, s56, v11
    v_add_u32 v29, 0x8000, v28
    v_subrev_u32 v30, 0x2000, v28
    v_add_u32 v31, 0x6000, v28
    v_add_u32 v9, 0xe000, v28
    s_lshl_b32 s58, s4, 5
    s_add_u32 s58, s58, s5          ; cp = 32x + r
    s_lshl_b32 s56, s58, 13
    s_lshl_b32 s57, s3, 10
    s_add_u32 s56, s56, s57
    v_add_u32 v8, s56, v10
    s_add_u32 s56, s56, s57
    v_add_u32 v7, s56, v10
    v_and_b32 v2, 15, v1
    s_lshl_b32 s56, s4, 6
    s_lshl_b32 s57, s3, 4
    s_add_u32 s56, s56, s57
    v_add_lshl_u32 v6, v2, s56, 3
    s_lshl_b32 s59, s3, 10
    s_lshl_b32 s57, s58, 2
    s_waitcnt lgkmcnt(0)
    s_load_dword s60, s[50:51], s57
    """)
    a(f"""
    s_or_b32 s55, s55, 0x80000000
    s_or_b32 s56, s2, s3
    s_cmp_lg_u32 s56, 0
    s_cbranch_scc1 L_nononce
    v_mov_b32 v2, s54
    v_mov_b32 v3, s55
    v_mov_b32 v4, 0
    s_mov_b64 exec, 1
    buffer_store_dwordx2 v[2:3], v4, s[44:47], 0 offen sc1
    s_mov_b64 exec, -1
    L_nononce:
    s_cmp_lg_u32 s3, 0
    s_cbranch_scc1 L_nok8
    s_mov_b32 m0, {KL + 8192}
    s_nop 0
    buffer_load_dwordx4 v9, s[12:15], 0 offen lds
    L_nok8:
    """)
    def dma(ldsoff_expr_reg, ldsconst, voff, srd, soff, tag, flags=""):
        a(f"s_add_u32 m0, {ldsoff_expr_reg}, {ldsconst}")
        a("s_nop 0")
        vm.issue(f"buffer_load_dwordx4 v{voff}, {srd}, {soff} offen {flags} lds", tag)
    dma("s59", KL, 30, "s[12:15]", 0, "p1")
    dma("s59", KL+4096, 31, "s[12:15]", 0, "p1")
    dma("s59", VL, 28, "s[16:19]", 0, "p1")
    dma("s59", VL+4096, 29, "s[16:19]", 0, "p1")
    vm.issue("global_load_dwordx2 v[32:33], v6, s[48:49]", "p1")
    vm.issue("buffer_load_dwordx4 v[36:39], v7, s[8:11], 0 offen", "p1")
    vm.issue("buffer_load_dwordx4 v[40:43], v7, s[8:11], 0 offen offset:1024", "p1")
    vm.issue("global_load_dwordx4 v[44:47], v10, s[52:53]", "p1")
    dma("s59", WDL, 28, "s[32:35]", 0, "p1")
    dma("s59", WDL+4096, 29, "s[32:35]", 0, "p1")
    dma("s59", HL+512, 8, "s[20:23]", 0, "ssm")
    a("s_movk_i32 s57, 4096")
    dma("s59", HL+4608+512, 8, "s[20:23]", "s57", "ssm")

    a(f"""
    v_lshrrev_b32 v3, 4, v1
    v_and_b32 v4, 15, v1
    v_mul_u32_u24 v3, {16*3584}, v3
    v_lshl_add_u32 v3, v4, 4, v3
    s_and_b32 s64, s3, 1            ; wf
    s_lshr_b32 s65, s3, 1           ; ws
    s_lshl_b32 s56, s64, 3
    s_lshl_b32 s57, s65, 2
    s_add_u32 s56, s56, s57
    s_mul_i32 s56, s56, 3584
    s_lshl_b32 s57, s7, 8
    s_add_u32 s56, s56, s57
    v_add_u32 v20, s56, v3
    v_add_u32 v21, 3584, v20
    v_add_u32 v22, {2*3584}, v20
    v_add_u32 v23, {3*3584}, v20
    v_lshrrev_b32 v3, 3, v1
    v_lshlrev_b32 v3, 14, v3
    v_and_b32 v5, 7, v1
    v_lshl_add_u32 v3, v5, 4, v3
    s_lshl_b32 s56, s6, 17
    s_lshl_b32 s57, s3, 12
    s_add_u32 s56, s56, s57
    v_add_u32 v24, s56, v3
    v_add_u32 v25, 1024, v24
    v_add_u32 v26, 2048, v24
    v_add_u32 v27, 3072, v24
    s_mul_i32 s62, s3, {4*1056}
    """)
    def dma_setup(c):
        return [f"s_mov_b32 s66, {c*64*3584}", f"s_movk_i32 s67, {c*128}"]
    def dma_pieces(c):
        st = c % 3
        out = []
        for q in range(4):
            out.append((f"s_add_u32 m0, s62, {st*STAGE + X_OFF + q*1056}", f"buffer_load_dwordx4 v{24+q}, s[8:11], s67 offen lds"))
            out.append((f"s_add_u32 m0, s62, {st*STAGE + WG_OFF + q*1056}", f"buffer_load_dwordx4 v{20+q}, s[24:27], s66 offen lds"))
            out.append((f"s_add_u32 m0, s62, {st*STAGE + WU_OFF + q*1056}", f"buffer_load_dwordx4 v{20+q}, s[28:31], s66 offen lds"))
        return out
    a("s_cmp_ge_u32 s5, 28\ns_cbranch_scc1 L_skip_c0")
    for l in dma_setup(0): a(l)
    for m, ld in dma_pieces(0):
        a(m); a("s_nop 0"); a(ld)
    a("s_waitcnt vmcnt(14)")
    a("s_branch L_c0_done")
    a("L_skip_c0:")
    a("s_waitcnt vmcnt(2)")
    a("L_c0_done:")
    vm.ops = ["ssm", "ssm"] + ["c0"]*12
    a(f"""
    v_bfe_u32 v3, v1, 2, 3
    v_mul_u32_u24 v3, 1056, v3
    v_lshrrev_b32 v4, 5, v1
    v_lshl_add_u32 v3, v4, 8, v3
    v_and_b32 v4, 3, v1
    v_lshl_add_u32 v3, v4, 3, v3
    s_lshl_b32 s56, s64, 7
    v_add_u32 v12, s56, v3
    v_add_u32 v13, {STAGE}, v12
    v_add_u32 v14, {2*STAGE}, v12
    v_and_b32 v3, 15, v1
    v_mul_u32_u24 v3, 1056, v3
    v_lshrrev_b32 v4, 4, v1
    v_lshl_add_u32 v3, v4, 4, v3
    s_lshl_b32 s56, s65, 9
    s_add_u32 s56, s56, {X_OFF}
    v_add_u32 v15, s56, v3
    v_add_u32 v16, {STAGE}, v15
    v_add_u32 v17, {2*STAGE}, v15
    v_mov_b32 v48, 0
    v_mov_b32 v49, 0
    v_mov_b32 v50, 0
    v_mov_b32 v51, 0
    v_lshrrev_b32 v3, 5, v1
    v_mul_u32_u24 v3, 4608, v3
    v_and_b32 v4, 31, v1
    v_lshl_add_u32 v3, v4, 4, v3
    v_add_u32 v3, {HL}, v3
    ds_write_b128 v3, v[48:51]
    s_barrier
    """)
    stamp()
    a(f"""
    v_lshrrev_b32 v3, 4, v1
    v_bfe_u32 v4, v1, 2, 2
    v_lshl_add_u32 v3, v3, 4, v4
    v_lshlrev_b32 v3, 7, v3
    v_and_b32 v5, 3, v1
    v_lshl_add_u32 v3, v5, 3, v3
    s_lshl_b32 s56, s3, 5
    s_add_u32 s56, s56, {KL}
    v_add_u32 v2, s56, v3
    """)
    KP, VP = 52, 62
    for i in range(5):
        a(f"ds_read_b64_tr_b16 v[{KP+2*i}:{KP+2*i+1}], v2 offset:{4*128 + i*512}")
    for i in range(4):
        a(f"ds_read_b64_tr_b16 v[{VP+2*i}:{VP+2*i+1}], v2 offset:{VL-KL + i*512}")
    a(f"""
    v_lshrrev_b32 v3, 2, v1          ; 4kg+rr
    v_lshlrev_b32 v3, 7, v3
    v_lshl_add_u32 v3, v5, 4, v3
    s_lshl_b32 s56, s65, 12
    s_lshl_b32 s57, s64, 6
    s_add_u32 s56, s56, s57
    s_add_u32 s56, s56, {WDL}
    v_add_u32 v3, s56, v3
    ds_read_b64_tr_b16 v[72:73], v3
    ds_read_b64_tr_b16 v[74:75], v3 offset:2048
    ds_read_b64_tr_b16 v[76:77], v3 offset:8
    ds_read_b64_tr_b16 v[78:79], v3 offset:2056
    ; weights: S0=v32 (w0,w1) S1=v33 (w2,w3)
    s_mov_b32 s61, 0xffff0000
    v_alignbit_b32 v80, v33, v33, 16     ; W32 = (w3,w2)
    v_alignbit_b32 v81, v32, v32, 16     ; W10 = (w1,w0)
    v_and_b32 v82, s61, v33              ; W03 = (0,w3)
    v_bfi_b32 v83, s61, v32, v33         ; W21 = (w2,w1)
    v_and_b32 v84, 0xffff, v32           ; W0z = (w0,0)
    """)
    a("v_mov_b32 v85, 0\nv_mov_b32 v86, 0\ns_mov_b32 s63, 0x3f803f80")
    for i in range(4):
        a(f"""
        v_lshlrev_b32 v88, 16, v{44+i}
        v_and_b32 v89, s61, v{44+i}
        v_lshlrev_b32 v90, 16, v{36+i}
        v_and_b32 v91, s61, v{36+i}
        v_lshlrev_b32 v92, 16, v{40+i}
        v_and_b32 v93, s61, v{40+i}
        v_mul_f32 v90, v90, v88
        v_mul_f32 v91, v91, v89
        v_mul_f32 v92, v92, v88
        v_mul_f32 v93, v93, v89
        v_cvt_pk_bf16_f32 v90, v90, v91
        v_cvt_pk_bf16_f32 v92, v92, v93
        v_dot2_f32_bf16 v85, v90, s63, v85
        v_dot2_f32_bf16 v86, v92, s63, v86
        """)
    a("s_waitcnt lgkmcnt(0)")
    a(f"""
    s_mul_i32 s56, s4, 56
    s_lshl_b32 s57, s5, 1
    s_add_u32 s56, s56, s57
    s_add_u32 s56, s56, s65          ; dt*56 + q
    s_lshl_b32 s56, s56, 12
    s_lshl_b32 s57, s64, 11
    s_add_u32 s56, s56, s57
    s_add_u32 s56, s56, {WDP}
    s_cmp_ge_u32 s5, 28
    s_cselect_b32 s56, 0x10000000, s56
    """)
    vm.issue("buffer_store_dwordx4 v[72:75], v10, s[40:43], s56 offen sc1", "p1st")
    vm.issue("buffer_store_dwordx4 v[76:79], v10, s[40:43], s56 offen offset:1024 sc1", "p1st")
    KS = 96
    for aa in range(8):
        P = lambda i: f"v{KP + i + 2}"
        a(f"v_dot2_f32_bf16 v{KS+2*aa}, {P(aa-2)}, v82, 0")
        a(f"v_dot2_f32_bf16 v{KS+2*aa+1}, {P(aa-1)}, v80, 0")
    for aa in range(8):
        P = lambda i: f"v{KP + i + 2}"
        a(f"v_dot2_f32_bf16 v{KS+2*aa}, {P(aa-1)}, v83, v{KS+2*aa}")
        a(f"v_dot2_f32_bf16 v{KS+2*aa+1}, {P(aa)}, v81, v{KS+2*aa+1}")
    for aa in range(8):
        P = lambda i: f"v{KP + i + 2}"
        a(f"v_dot2_f32_bf16 v{KS+2*aa}, {P(aa)}, v84, v{KS+2*aa}")
    for aa in range(8):
        a(f"v_lshlrev_b32 v{112+2*aa}, 16, v{VP+aa}")
        a(f"v_and_b32 v{113+2*aa}, s61, v{VP+aa}")
    for s in range(16):
        a(f"v_mul_f32 v{KS+s}, v{KS+s}, v{112+s}")
    for jj in range(8):
        a(f"v_cvt_pk_bf16_f32 v{112+jj}, v{KS+15-2*jj}, v{KS+14-2*jj}")
    a(f"""
    v_and_b32 v2, 15, v1
    v_mul_u32_u24 v2, 144, v2
    v_lshrrev_b32 v3, 4, v1
    v_sub_u32 v3, 3, v3
    v_lshl_add_u32 v2, v3, 5, v2
    s_mul_i32 s56, s3, {16*144}
    s_add_u32 s56, s56, {OUTL}
    v_add_u32 v2, s56, v2
    ds_write_b128 v2, v[112:115]
    ds_write_b128 v2, v[116:119] offset:16
    v_lshrrev_b32 v3, 3, v1
    v_mul_u32_u24 v4, 144, v3
    v_and_b32 v5, 7, v1
    v_lshl_add_u32 v4, v5, 4, v4
    v_add_u32 v4, s56, v4
    ds_read_b128 v[96:99], v4
    ds_read_b128 v[100:103], v4 offset:{8*144}
    v_lshlrev_b32 v3, 12, v3
    v_lshl_add_u32 v3, v5, 4, v3
    s_lshl_b32 s56, s4, 18
    s_lshl_b32 s57, s3, 16
    s_add_u32 s56, s56, s57
    s_sub_u32 s57, 31, s5
    s_lshl_b32 s57, s57, 7
    s_add_u32 s56, s56, s57
    s_add_u32 s56, s56, {KVT}
    s_add_u32 s57, s56, 0x8000
    """)
    for ctrl in ("row_shr:1 row_mask:0xf bank_mask:0xf bound_ctrl:0", "row_shr:2 row_mask:0xf bank_mask:0xf bound_ctrl:0",
                 "row_shr:4 row_mask:0xf bank_mask:0xf bound_ctrl:0", "row_shr:8 row_mask:0xf bank_mask:0xf bound_ctrl:0",
                 "row_bcast:15 row_mask:0xa bank_mask:0xf", "row_bcast:31 row_mask:0xc bank_mask:0xf"):
        a(f"v_add_f32_dpp v85, v85, v85 {ctrl}")
        a(f"v_add_f32_dpp v86, v86, v86 {ctrl}")
        a("s_nop 0")
    a(f"""
    v_cvt_pk_bf16_f32 v85, v85, v86
    s_mov_b32 s63, 0xbfb8aa3b            ; -log2(e)
    v_lshlrev_b32 v88, 16, v85
    v_and_b32 v89, s61, v85
    v_mul_f32 v88, s63, v88
    v_mul_f32 v89, s63, v89
    v_exp_f32 v88, v88
    v_exp_f32 v89, v89
    s_nop 0
    v_add_f32 v88, 1.0, v88
    v_add_f32 v89, 1.0, v89
    v_rcp_f32 v88, v88
    v_rcp_f32 v89, v89
    s_nop 0
    v_cvt_pk_bf16_f32 v85, v88, v89
    v_lshlrev_b32 v88, 16, v85           ; gA
    v_and_b32 v90, s61, v85              ; gB
    v_sub_f32 v89, 1.0, v88
    v_sub_f32 v91, 1.0, v90
    v_cvt_pk_bf16_f32 v85, v89, v91
    v_lshlrev_b32 v89, 16, v85
    v_and_b32 v91, s61, v85
    s_waitcnt lgkmcnt(0)
    """)
    vm.issue("buffer_store_dwordx4 v[96:99], v3, s[40:43], s56 offen sc1", "p1st")
    vm.issue("buffer_store_dwordx4 v[100:103], v3, s[40:43], s57 offen sc1", "p1st")
    a(f"""
    s_lshl_b32 s56, s58, 6
    s_lshl_b32 s57, s3, 4
    s_add_u32 s56, s56, s57
    s_add_u32 s56, s56, {GATE}
    v_mov_b32 v4, s56
    s_mov_b32 exec_lo, 0
    s_mov_b32 exec_hi, 0x80000000
    """)
    vm.issue("buffer_store_dwordx4 v[88:91], v4, s[40:43], 0 offen sc1", "p1st")
    a("s_mov_b64 exec, -1")
    a("v_mov_b32 v4, 0")
    vm.issue("buffer_load_dwordx2 v[18:19], v4, s[44:47], 0 offen sc1", "nonce")
    stamp()
    def get_nonce(name):
        a(f"""
        s_mov_b32 s56, 0
        L_nl_{name}:
        v_readfirstlane_b32 s54, v18
        v_readfirstlane_b32 s55, v19
        s_add_u32 s56, s56, 1
        s_cmp_lg_u32 s55, 0
        s_cbranch_scc1 L_nok_{name}
        s_cmp_lt_u32 s56, {SPIN_LIMIT}
        s_cbranch_scc0 L_nok_{name}
        s_sleep 1
        v_mov_b32 v4, 0
        buffer_load_dwordx2 v[18:19], v4, s[44:47], 0 offen sc1
        s_waitcnt vmcnt(0)
        s_branch L_nl_{name}
        L_nok_{name}:
        """)
    def f1_flag():
        lab = a.label("L_f1")
        a(f"s_cmp_lg_u32 s3, 0\ns_cbranch_scc1 {lab}")
        a(f"s_lshl_b32 s56, s58, 3")
        if F1: a(f"s_add_u32 s56, s56, {F1}")
        a(f"v_mov_b32 v2, s54\nv_mov_b32 v3, s55\nv_mov_b32 v4, s56")
        a("s_mov_b64 exec, 1")
        a("buffer_store_dwordx2 v[2:3], v4, s[40:43], 0 offen sc1")
        a("s_mov_b64 exec, -1")
        a(f"{lab}:")
    a("s_cmp_lt_u32 s5, 28\ns_cbranch_scc1 L_gemm1")
    a("s_waitcnt vmcnt(0)\ns_barrier")
    get_nonce("sp")
    f1_flag()
    a("s_branch L_conv")
    a("L_gemm1:")
    vACC, vFR, FS = 128, 32, 48
    def frag_reads(i, ks, fs):
        st = i % 3
        base = vFR + fs * FS
        def rdA(mat, t):
            d = base + (mat*4+t)*4
            off = mat*IMG + t*32 + ks*512
            return [f"ds_read_b64_tr_b16 v[{d}:{d+1}], v{12+st} offset:{off}",
                    f"ds_read_b64_tr_b16 v[{d+2}:{d+3}], v{12+st} offset:{off + 8*1056}"]
        def rdB(u):
            d = base + 32 + u*4
            return [f"ds_read_b128 v[{d}:{d+3}], v{15+st} offset:{u*128 + ks*64}"]
        out = rdA(0, 0) + rdB(0) + rdB(1) + rdB(2) + rdB(3)
        for mat in range(2):
            for t in range(4):
                if (mat, t) != (0, 0): out += rdA(mat, t)
        return out
    def mfmas(fs, first):
        base = vFR + fs * FS
        out = []
        for mat in range(2):
            for t in range(4):
                for u in range(4):
                    acc = vACC + ((mat*4+t)*4 + u)*4
                    A = base + (mat*4+t)*4; B = base + 32 + u*4
                    c = "0" if first else f"v[{acc}:{acc+3}]"
                    out.append(f"v_mfma_f32_16x16x32_bf16 v[{acc}:{acc+3}], v[{A}:{A+3}], v[{B}:{B+3}], {c}")
        return out
    for l in dma_setup(1): a(l)
    for m, ld in dma_pieces(1):
        a(m); a("s_nop 0"); vm.issue(ld, "c1")
    vm.wait("c0")
    a("s_barrier")
    stamp()
    for l in frag_reads(0, 0, 0): a(l)
    step = 0
    for i in range(8):
        for ks in range(2):
            fs = step & 1
            nxt = []
            if ks == 0: nxt = frag_reads(i, 1, fs ^ 1)
            elif i < 7: nxt = frag_reads(i+1, 0, fs ^ 1)
            a("s_waitcnt lgkmcnt(0)")
            dm = []; setup = []; c = None
            if ks == 0:
                c = i + 2
                if c < 8:
                    if i == 0: setup = dma_setup(c); dm = dma_pieces(c)
                    else: dm = dma_pieces(c)[6:]
            else:
                c = i + 3
                if c < 8: setup = dma_setup(c); dm = dma_pieces(c)[:6]
            if ks == 1 and i < 7:
                vm.wait(f"c{i+1}")
                a("s_barrier")
                if i == 1:
                    get_nonce("g1")
                    f1_flag()
            mf = mfmas(fs, i == 0 and ks == 0)
            slots = [[] for _ in mf]
            for k, rd in enumerate(nxt): slots[k].append((rd, None))
            for k, s in enumerate(setup): slots[k].append((s, None))
            nd = len(dm)
            for k, (m, ld) in enumerate(dm):
                p = 4 + (k * 27) // nd
                slots[p].append((m, None))
                slots[p+1].insert(0, (ld, f"c{c}"))
            if ks == 1 and i == 1:
                vm.ops.remove("f1?")
            for m, s in zip(mf, slots):
                a(m)
                for l, tag in s:
                    if tag: vm.issue(l, tag)
                    else: a(l)
            step += 1
    stamp()
    a(f"""
    s_lshl_b32 s56, s6, 1
    s_add_u32 s56, s56, s65
    s_lshl_b32 s57, s7, 1
    s_add_u32 s57, s57, s64
    s_lshl_b32 s68, s56, 5
    s_add_u32 s68, s68, s57
    s_lshl_b32 s68, s68, 3
    s_add_u32 s68, s68, {F2}
    s_mul_i32 s56, s56, 28
    s_add_u32 s56, s56, s57
    s_lshl_b32 s56, s56, 13
    s_add_u32 s56, s56, {HWS}
    s_add_u32 s57, s56, 4096
    """)
    for tp in range(2):
        for u in range(4):
            d = 32 + (tp*4+u)*4
            for tt in range(2):
                t = tp*2 + tt
                g = vACC + (t*4 + u)*4; up = vACC + ((4+t)*4 + u)*4
                for rr in range(4):
                    a(f"v_mul_f32 v{g+rr}, v{g+rr}, v{up+rr}")
                a(f"v_cvt_pk_bf16_f32 v{d+2*tt}, v{g}, v{g+1}")
                a(f"v_cvt_pk_bf16_f32 v{d+2*tt+1}, v{g+2}, v{g+3}")
            vm.issue(f"buffer_store_dwordx4 v[{d}:{d+3}], v10, s[40:43], {'s56' if tp == 0 else 's57'} offen offset:{u*1024} sc1", "hst")
    vm.wait_all()
    flag_store("s68", "f2")
    a("L_conv:")
    vm.ops = []
    stamp()
    a(f"""
    s_and_b32 s69, s5, 7             ; dt
    s_lshr_b32 s70, s5, 3
    s_lshl_b32 s56, s4, 2
    s_add_u32 s70, s70, s56          ; st
    v_mov_b32 v2, s4
    v_mov_b32 v3, s69
    v_cmp_gt_u32 vcc, 32, v1
    v_and_b32 v4, 31, v1
    s_nop 0
    v_cndmask_b32 v2, v3, v2, vcc
    v_lshl_add_u32 v2, v2, 5, v4
    v_lshlrev_b32 v5, 3, v2
    """)
    if F1: a(f"v_add_u32 v5, {F1}, v5")
    poll(5, 6, "f1")
    a(f"""
    s_lshl_b32 s56, s58, 13
    s_lshl_b32 s57, s3, 11
    s_add_u32 s56, s56, s57
    s_add_u32 s56, s56, {KVT}
    """)
    vm.issue("buffer_load_dwordx4 v[32:35], v10, s[40:43], s56 offen sc1", "u")
    vm.issue("buffer_load_dword v36, v10, s[40:43], s56 offen offset:16 sc1", "u")
    vm.issue("buffer_load_dwordx4 v[40:43], v10, s[40:43], s56 offen offset:1024 sc1", "u")
    vm.issue("buffer_load_dword v44, v10, s[40:43], s56 offen offset:1040 sc1", "u")
    a(f"""
    s_mul_i32 s56, s65, 8320
    s_lshl_b32 s57, s64, 11
    s_add_u32 s57, s57, s56
    v_add_u32 v2, s57, v10
    v_bfe_u32 v3, v1, 4, 1
    v_mul_u32_u24 v3, 4160, v3
    v_and_b32 v4, 15, v1
    v_lshl_add_u32 v3, v4, 2, v3
    s_add_u32 s57, s56, {UL+4096}
    v_add_u32 v3, s57, v3
    v_mov_b32 v5, 0
    v_and_b32 v6, 127, v0
    v_cmp_eq_u32 vcc, 127, v6
    v_and_b32 v7, 1, v1
    v_xor_b32 v7, 1, v7
    v_mul_u32_u24 v7, 4160, v7
    v_sub_u32 v8, 15, v4
    v_lshrrev_b32 v8, 1, v8
    v_lshl_add_u32 v7, v8, 2, v7
    v_lshrrev_b32 v8, 4, v1
    v_lshl_add_u32 v7, v8, 4, v7
    s_lshl_b32 s57, s64, 8
    s_add_u32 s57, s57, s56
    v_add_u32 v12, s57, v7
    v_add_u32 v13, 1024, v12
    v_add_u32 v14, 2048, v12
    v_add_u32 v15, 3072, v12
    v_lshlrev_b32 v7, 5, v4
    v_lshl_add_u32 v7, v8, 4, v7
    s_mul_i32 s56, s65, 4608
    s_lshl_b32 s57, s64, 8
    s_add_u32 s56, s56, s57
    s_add_u32 s56, s56, {HL+32}
    v_add_u32 v16, s56, v7
    s_barrier
    """)
    vm.wait("u")
    a(f"""
    v_cndmask_b32 v44, v44, v5, vcc
    v_alignbit_b32 v48, v33, v32, 16
    v_alignbit_b32 v49, v34, v33, 16
    v_alignbit_b32 v50, v35, v34, 16
    v_alignbit_b32 v51, v36, v35, 16
    v_alignbit_b32 v52, v41, v40, 16
    v_alignbit_b32 v53, v42, v41, 16
    v_alignbit_b32 v54, v43, v42, 16
    v_alignbit_b32 v55, v44, v43, 16
    ds_write_b128 v2, v[32:35] offset:{UL}
    ds_write_b128 v2, v[40:43] offset:{UL+1024}
    ds_write_b128 v2, v[48:51] offset:{UL+4160}
    ds_write_b128 v2, v[52:55] offset:{UL+4160+1024}
    ds_write_b32 v3, v5
    s_mul_i32 s71, s69, 56
    s_mul_i32 s56, s3, 14
    s_add_u32 s71, s71, s56
    s_lshl_b32 s71, s71, 12
    s_add_u32 s71, s71, {WDP}
    s_waitcnt lgkmcnt(0)
    s_barrier
    """)
    stamp()
    CACC = 224; CF = 32
    def conv_reads(bb, fs):
        base = CF + fs*64
        out = []
        for k in range(8):
            al, m = k, k
            ap = 7 - al
            d = base + 4*al
            o = 128*(ap & 1) + 16*bb
            out.append(f"ds_read2_b32 v[{d}:{d+1}], v{12 + (ap >> 1)} offset0:{o} offset1:{o+1}")
            out.append(f"ds_read2_b32 v[{d+2}:{d+3}], v{12 + (ap >> 1)} offset0:{o+2} offset1:{o+3}")
            d = base + 32 + 4*m
            out.append(f"ds_read_b128 v[{d}:{d+3}], v16 offset:{64*bb + 512*m}")
        return out
    def conv_mfmas(fs, first):
        base = CF + fs*64
        out = []; seen = set()
        for al in range(8):
            for m in range(8 - al):
                n = al + m
                acc = CACC + 4*n
                c = "0" if (first and n not in seen) else f"v[{acc}:{acc+3}]"
                seen.add(n)
                out.append(f"v_mfma_f32_16x16x32_bf16 v[{acc}:{acc+3}], v[{base+4*al}:{base+4*al+3}], v[{base+32+4*m}:{base+32+4*m+3}], {c}")
        return out
    for l in conv_reads(0, 0): a(l)
    wdn = 0
    for bb in range(4):
        a("s_waitcnt lgkmcnt(0)")
        mf = conv_mfmas(bb & 1, bb == 0)
        nxt = conv_reads(bb+1, (bb+1) & 1) if bb < 3 else []
        for k, m in enumerate(mf):
            a(m)
            if k < len(nxt): a(nxt[k])
            if k % 5 in (1, 3) and wdn < 14*(bb+1):
                if wdn % 4 == 0 and wdn: a("s_add_u32 s71, s71, 4096")
                vm.issue(f"buffer_load_dwordx4 a[{4*wdn}:{4*wdn+3}], v10, s[40:43], s71 offen offset:{(wdn % 4)*1024} sc1", "wd")
                wdn += 1
    assert wdn == 56, wdn
    stamp()
    a(f"""
    v_lshrrev_b32 v2, 4, v1
    v_lshl_add_u32 v2, v2, 6, v10        ; lane*16 + (l>>4)*64
    s_mul_i32 s56, s3, {8*1280}
    s_add_u32 s56, s56, {PL}
    v_add_u32 v2, s56, v2
    v_and_b32 v3, 3, v1
    v_mul_u32_u24 v3, 320, v3
    v_lshrrev_b32 v4, 2, v1
    v_lshl_add_u32 v3, v4, 4, v3
    s_mul_i32 s56, s3, 2560
    s_add_u32 s56, s56, {PL}
    v_add_u32 v3, s56, v3
    v_lshlrev_b32 v4, 3, v1
    s_lshl_b32 s56, s3, 10
    s_sub_u32 s56, {UL+4088-512}, s56
    v_sub_u32 v4, s56, v4
    s_lshl_b32 s72, s60, 16              ; D0
    s_and_b32 s73, s60, 0xffff0000       ; D1
    """)
    for n in range(8):
        a(f"ds_write_b128 v2, v[{CACC+4*n}:{CACC+4*n+3}] offset:{n*1280}")
    for t in range(2):
        for ch in range(2):
            a(f"ds_read_b64 v[{96+(t*2+ch)*2}:{97+(t*2+ch)*2}], v4 offset:{ch*8320 + (1-t)*512}")
    a("s_waitcnt lgkmcnt(0)\ns_barrier")
    for t in range(2):
        for w in range(4):
            d = 32 + (t*4+w)*4
            a(f"ds_read_b128 v[{d}:{d+3}], v3 offset:{w*8*1280 + t*1280}")
    for t in range(2):
        for ch in range(2):
            s = 96 + (t*2+ch)*2; d = 64 + (t*2+ch)*4
            a(f"v_and_b32 v{d}, s61, v{s+1}\nv_lshlrev_b32 v{d+1}, 16, v{s+1}\nv_and_b32 v{d+2}, s61, v{s}\nv_lshlrev_b32 v{d+3}, 16, v{s}")
    a(f"""
    s_lshl_b32 s56, s58, 13
    s_lshl_b32 s57, s3, 11
    s_add_u32 s56, s56, s57
    s_add_u32 s56, s56, {Y2}
    s_lshl_b32 s68, s3, 8
    s_add_u32 s68, s68, s58
    s_lshl_b32 s68, s68, 3
    s_add_u32 s68, s68, {F3}
    s_waitcnt lgkmcnt(0)
    """)
    for t in range(2):
        for ch in range(2):
            p0 = 32 + (t*4+2*ch)*4; p1 = p0 + 4; u = 64 + (t*2+ch)*4
            for rr in range(4):
                a(f"v_add_f32 v{p0+rr}, v{p0+rr}, v{p1+rr}")
            for rr in range(4):
                a(f"v_fma_f32 v{p0+rr}, v{u+rr}, s{72+ch}, v{p0+rr}")
        for rr in range(4):
            a(f"v_cvt_pk_bf16_f32 v{80+4*t+rr}, v{32+(t*4)*4+rr}, v{32+(t*4+2)*4+rr}")
        vm.issue(f"buffer_store_dwordx4 v[{80+4*t}:{83+4*t}], v10, s[40:43], s56 offen offset:{t*1024} sc1", "yst")
    vm.wait_all()
    flag_store("s68", "f3")
    stamp()
    a(f"""
    v_min_u32 v2, 6, v1
    s_lshl_b32 s56, s70, 5
    s_mul_i32 s57, s3, 7
    s_add_u32 s56, s56, s57
    v_add_lshl_u32 v5, v2, s56, 3
    v_add_u32 v5, {F2}, v5
    """)
    poll(5, 6, "f2")
    a(f"""
    s_mul_i32 s71, s70, 56
    s_mul_i32 s56, s3, 14
    s_add_u32 s71, s71, s56
    s_lshl_b32 s71, s71, 12
    s_add_u32 s71, s71, {HWS}
    """)
    for sg in range(4):
        a(f"s_add_u32 s56, s3, {sg}\ns_and_b32 s56, s56, 3\ns_lshl_b32 s56, s56, 10\nv_add_u32 v{12+sg}, s56, v10")
    GACC = 192; HR = 32; RING = 10
    def hload(i):
        for sg in range(4):
            d = HR + ((i % RING)*4 + sg)*4
            vm.issue(f"buffer_load_dwordx4 v[{d}:{d+3}], v{12+sg}, s[40:43], s71 offen sc1", f"h{i}")
        a("s_add_u32 s71, s71, 4096")
    for i in range(RING): hload(i)
    for i in range(14):
        vm.wait(f"h{i}")
        for dtile in range(4):
            for sg in range(4):
                acc = GACC + (sg*4 + dtile)*4
                A = (i*4 + dtile)*4; B = HR + ((i % RING)*4 + sg)*4
                c = "0" if i == 0 else f"v[{acc}:{acc+3}]"
                a(f"v_mfma_f32_16x16x32_bf16 v[{acc}:{acc+3}], a[{A}:{A+3}], v[{B}:{B+3}], {c}")
        if i + RING < 14: hload(i + RING)
    stamp()
    for sg in range(1, 4):
        a(f"s_add_u32 s56, s3, {sg}\ns_and_b32 s56, s56, 3\ns_mul_i32 s56, s56, {12*1024}\ns_add_u32 s56, s56, {XL + (sg-1)*4096}\nv_add_u32 v{12+sg}, s56, v10")
    a(f"s_mul_i32 s56, s3, {12*1024}\ns_add_u32 s56, s56, {XL}\nv_add_u32 v12, s56, v10")
    for sg in range(1, 4):
        for dtile in range(4):
            acc = GACC + (sg*4 + dtile)*4
            a(f"ds_write_b128 v{12+sg}, v[{acc}:{acc+3}] offset:{dtile*1024}")
    a(f"""
    v_and_b32 v2, 31, v1
    s_lshr_b32 s56, s70, 3
    s_lshl_b32 s56, s56, 8
    s_lshl_b32 s57, s69, 5
    s_add_u32 s56, s56, s57
    v_add_lshl_u32 v5, v2, s56, 3
    v_add_u32 v5, {F3}, v5
    """)
    poll(5, 6, "f3")
    a(f"""
    v_and_b32 v2, 15, v1
    s_lshl_b32 s56, s70, 6
    s_lshl_b32 s57, s3, 4
    s_add_u32 s56, s56, s57
    v_add_u32 v2, s56, v2               ; s
    v_lshrrev_b32 v3, 4, v1             ; g
    v_lshlrev_b32 v4, 10, v2
    v_lshl_add_u32 v4, v3, 4, v4
    s_lshl_b32 s56, s69, 7
    v_add_u32 v4, s56, v4
    v_lshlrev_b32 v5, 15, v3
    v_lshl_add_u32 v5, v2, 2, v5
    s_lshl_b32 s56, s69, 18
    s_add_u32 s56, s56, {Y2}
    v_lshlrev_b32 v6, 3, v2
    v_add_u32 v6, {GATE}, v6
    """)
    vm.issue("buffer_load_dwordx4 v[32:35], v4, s[8:11], 0 offen", "fin")
    vm.issue("buffer_load_dwordx4 v[36:39], v4, s[8:11], 0 offen offset:64", "fin")
    vm.issue("buffer_load_dwordx2 v[48:49], v6, s[40:43], 0 offen sc1", "fin")
    for hh in range(2):
        for i in range(4):
            a(f"s_add_u32 s57, s56, {(16*hh + i)*8192}")
            vm.issue(f"buffer_load_dword v{40+4*hh+i}, v5, s[40:43], s57 offen sc1", "fin")
    a("s_waitcnt lgkmcnt(0)\ns_barrier")
    for k in range(12):
        a(f"ds_read_b128 v[{64+4*k}:{67+4*k}], v12 offset:{k*1024}")
    a("s_waitcnt lgkmcnt(0)")
    for sgi in range(3):
        for e in range(16):
            a(f"v_add_f32 v{GACC+e}, v{GACC+e}, v{64+16*sgi+e}")
    vm.wait("fin")
    for hh in range(2):
        for i in range(4):
            q = 32 + 4*hh + i; y = 40 + 4*hh + i; b = GACC + 8*hh + 2*i
            a(f"""
            v_lshlrev_b32 v50, 16, v{q}
            v_and_b32 v51, s61, v{q}
            v_lshlrev_b32 v52, 16, v{y}
            v_and_b32 v53, s61, v{y}
            v_mul_f32 v50, v50, v52
            v_mul_f32 v51, v51, v53
            v_mul_f32 v{b}, v49, v{b}
            v_mul_f32 v{b+1}, v49, v{b+1}
            v_fma_f32 v50, v48, v50, v{b}
            v_fma_f32 v51, v48, v51, v{b+1}
            v_cvt_pk_bf16_f32 v{56+4*hh+i}, v50, v51
            """)
        vm.issue(f"buffer_store_dwordx4 v[{56+4*hh}:{59+4*hh}], v4, s[36:39], 0 offen offset:{64*hh}", "out")
    if stamps:
        vm.wait_all()
        stamp()
        a(f"""
        s_waitcnt lgkmcnt(0)
        s_lshl_b32 s56, s2, 2
        s_add_u32 s56, s56, s3
        s_lshl_b32 s56, s56, 7
        s_add_u32 s56, s56, {STAMP}
        v_mov_b32 v1, s56
        s_mov_b64 exec, 1
        """)
        for i in range(2*nst[0]):
            a(f"v_mov_b32 v2, s{76+i}")
            a(f"buffer_store_dword v2, v1, s[40:43], 0 offen offset:{4*i}")
    a("L_end:\ns_endpgm")
    return wrap(a.text(), 256, 256, 160*1024, vgpr=512, sgpr=102, accum=256, header=HEADER)

if __name__ == "__main__":
    open("k1.s", "w").write(gen(False))
    open("k1_st.s", "w").write(gen(True))
```

```python
import sys
from asmlib import *

IMG = 16896
WG_OFF, WU_OFF, X_OFF, STAGE = 0, IMG, 2*IMG, 3*IMG
HL = 3*STAGE
VL = 2*STAGE
KL = VL+8192
OUTL = 2*STAGE+X_OFF
WDUL = 2*STAGE+IMG
UL = 2*STAGE
PL = 0
XL = 45056
F1, F2, F3, FW, GATE, STAMP = 0x0, 0x20000, 0x40000, 0x8000, 0xC000, 0x80000
KVT, Y2, WDP, HWS = 0x100000, 0x400000, 0x800000, 0x1000000
OOR = 0x10000000
SPIN_LIMIT = 200000

HEADER = open("gated_mix__ssm_conv_h3__glu_gated_bilinear__prompt.s.ref").read().split("; @launch")[0]

class VM:
    def __init__(self, a): self.a = a; self.ops = []
    skip = (); plain = (); ldf = {}
    def issue(self, text, tag):
        if tag in self.skip: return
        if tag in self.plain and "store" in text: text = text.replace(" sc1", "")
        if "load" in text and tag.rstrip("0123456789") in self.ldf: text = text.replace(" sc1", " " + self.ldf[tag.rstrip("0123456789")])
        self.a(text); self.ops.append(tag)
    def wait(self, tag):
        idx = [i for i, t in enumerate(self.ops) if t == tag]
        if not idx: return
        n = len(self.ops) - 1 - idx[-1]
        assert n <= 63, n
        self.a(f"s_waitcnt vmcnt({n})")
        self.ops = self.ops[len(self.ops)-n:] if n else []
    def wait_all(self):
        self.a("s_waitcnt vmcnt(0)"); self.ops = []

def lines(s): return [l.strip() for l in s.strip("\n").split("\n") if l.strip() and not l.strip().startswith(";")]

DEF = dict(pf_from=1, poll_ks=9, chk_ks=12, f1_ks=5, wd_ks=9, wd15=5, st_mode=2, sched=(6,)*12, st_step=1, late=8, sp_order=1, wd_conv=(2, 7, 8), gate_i=0, rot=0, codepf=True, s1_slot=0, prebar=True, c0_pre=6, p2_slot=34, f2_pos=(2, 0), hdepth=3, p2_in=False, y_first=True, h_pre=3, split1=True, split3=True, h_rate=2, q_i=12,
           f3_i=2, f3poll_i=8, f3chk_i=11, nt="nt", pf=True, sleep=4, outflags="", gx_first=4,
           stampset=('S0', 'g1end', 'f2', 'convloopend', 'hready', 'gi0', 'g2end', 'final'))

def gen(stamps=False, P=None):
    P = dict(DEF, **(P or {}))
    NT = P["nt"]
    LP5 = P.get("late_pos", 2) == 5
    WDUL = HL if LP5 else globals()["WDUL"]
    a = Asm(); vm = VM(a); vm.skip = P.get('skip', ()); vm.plain = P.get('plain', ()); vm.ldf = P.get('ldf', {})
    names = []
    def stamp(name):
        if stamps and (name in P["stampset"] or name == "entry"):
            if name not in names: names.append(name)
            k = 76 + 2*names.index(name)
            assert k <= 92
            a(f"{'s_memtime' if P.get('cyc') else 's_memrealtime'} s[{k}:{k+1}]")
    def emit(it):
        if isinstance(it, str): a(it)
        elif isinstance(it, list):
            for x in it: emit(x)
        elif callable(it): it()
        elif it[0] == "vm": vm.issue(it[1], it[2])
        elif it[0] == "wait": vm.wait(it[1])
        else: raise ValueError(it)
    def stream(mf, slots):
        for k, m in enumerate(mf):
            emit(m)
            for it in slots.get(k, []): emit(it)
    def put(slots, k, items): slots.setdefault(k, []).extend(items)
    def spread(slots, items, k0, k1):
        n = len(items)
        for i, it in enumerate(items): put(slots, k0 + (i * (k1 - k0)) // n, [it])
    def poll_issue(voff, tmp, tag):
        return ("vm", f"buffer_load_dwordx2 v[{tmp}:{tmp+1}], v{voff}, s[40:43], 0 offen sc1", tag)
    def poll_check(voff, tmp, tag, sleep=None):
        sleep = P["sleep"] if sleep is None else sleep
        def f():
            name = a.label("pl")
            vm.wait(tag)
            a(f"v_cmp_ne_u64 vcc, s[54:55], v[{tmp}:{tmp+1}]")
            a("s_mov_b32 s56, 0")
            a("s_cmp_eq_u64 vcc, 0")
            a(f"s_cbranch_scc1 L_ok_{name}")
            a(f"L_re_{name}:")
            if sleep: a(f"s_sleep {sleep}")
            a(f"buffer_load_dwordx2 v[{tmp}:{tmp+1}], v{voff}, s[40:43], 0 offen sc1")
            a("s_waitcnt vmcnt(0)")
            a(f"v_cmp_ne_u64 vcc, s[54:55], v[{tmp}:{tmp+1}]")
            a("s_add_u32 s56, s56, 1")
            a("s_cmp_eq_u64 vcc, 0")
            a(f"s_cbranch_scc1 L_ok_{name}")
            a(f"s_cmp_lt_u32 s56, {SPIN_LIMIT}")
            a(f"s_cbranch_scc1 L_re_{name}")
            a(f"L_ok_{name}:")
        return f
    def flag_items(sreg, tag):
        return [["s_mov_b64 exec, 1", ("vm", f"buffer_store_dwordx2 v[18:19], v9, s[40:43], {sreg} offen sc1", tag), "s_mov_b64 exec, -1"]]
    def get_nonce():
        name = a.label("nn")
        a(f"""
        s_mov_b32 s56, 0
        L_nl_{name}:
        v_readfirstlane_b32 s55, v19
        v_readfirstlane_b32 s54, v18
        s_cmp_lg_u32 s55, 0
        s_cbranch_scc1 L_nok_{name}
        s_add_u32 s56, s56, 1
        s_cmp_lt_u32 s56, {SPIN_LIMIT}
        s_cbranch_scc0 L_nok_{name}
        s_sleep 8
        buffer_load_dwordx2 v[18:19], v9, s[44:47], 0 offen sc1
        s_waitcnt vmcnt(0)
        s_branch L_nl_{name}
        L_nok_{name}:
        """)
    def dma_item(base_reg, ldsconst, voff, srd, soff, tag, flags=""):
        return [f"s_add_u32 m0, {base_reg}, {ldsconst}", "s_nop 0",
                ("vm", f"buffer_load_dwordx4 v{voff}, {srd}, {soff} offen {flags} lds", tag)]

    a(f"""
    s_cmp_ge_u32 s2, 256
    s_cbranch_scc1 L_end
    """)
    stamp("entry")
    if P.get("oldargs"):
        a("""
        s_load_dwordx2 s[12:13], s[0:1], 8
        s_load_dwordx2 s[16:17], s[0:1], 16
        s_load_dwordx2 s[8:9], s[0:1], 0
        s_load_dwordx2 s[24:25], s[0:1], 56
        s_load_dwordx2 s[28:29], s[0:1], 64
        s_load_dwordx2 s[48:49], s[0:1], 24
        s_load_dwordx2 s[20:21], s[0:1], 32
        s_load_dwordx2 s[50:51], s[0:1], 40
        s_load_dwordx2 s[32:33], s[0:1], 72
        s_load_dwordx2 s[52:53], s[0:1], 80
        s_load_dwordx2 s[36:37], s[0:1], 88
        s_load_dwordx2 s[44:45], s[0:1], 96
        s_load_dwordx2 s[40:41], s[0:1], 104
        s_memrealtime s[72:73]
        """)
    else:
        a("""
        s_load_dwordx16 s[80:95], s[0:1], 0
        s_load_dwordx8 s[48:55], s[0:1], 64
        s_load_dwordx4 s[96:99], s[0:1], 96
        s_memrealtime s[72:73]
        """)
    for r, n in ((8, 0x200000), (12, 0x200000), (16, 0x200000), (20, 0x200000), (24, 512*1792*2), (28, 512*1792*2),
                 (32, 1792*512*2), (36, 0x200000), (40, OOR), (44, 256)):
        a(f"s_mov_b32 s{r+2}, {n}\ns_mov_b32 s{r+3}, 0x20000")
    a(f"""
    v_lshrrev_b32 v2, 6, v0
    v_and_b32 v1, 63, v0
    s_and_b32 s4, s2, 7             ; x
    v_readfirstlane_b32 s3, v2
    s_lshr_b32 s5, s2, 3            ; r
    s_lshr_b32 s6, s4, 1
    s_lshl_b32 s6, s6, 2
    s_and_b32 s56, s5, 3
    s_add_u32 s6, s6, s56           ; mt
    s_and_b32 s7, s4, 1
    s_mul_i32 s7, s7, 7
    s_lshr_b32 s56, s5, 2
    s_add_u32 s7, s7, s56           ; j
    {"s_lshl_b32 s6, s4, 1" if P.get("map2") else ""}
    {"s_and_b32 s56, s5, 1" if P.get("map2") else ""}
    {"s_add_u32 s6, s6, s56" if P.get("map2") else ""}
    {"s_lshr_b32 s7, s5, 1" if P.get("map2") else ""}
    s_and_b32 s64, s3, 1            ; wf
    s_lshr_b32 s65, s3, 1           ; ws
    s_and_b32 s69, s5, 7            ; dt
    s_lshr_b32 s70, s5, 3
    s_lshl_b32 s56, s4, 2
    s_add_u32 s70, s70, s56         ; st
    s_lshl_b32 s58, s4, 5
    s_add_u32 s58, s58, s5          ; cp = 32x + r
    s_mov_b32 s61, 0xffff0000
    s_add_u32 s101, s69, s70
    s_and_b32 s101, s101, {3 if P["rot"] else 0}
    {"s_mul_i32 s101, s69, 7" if P["rot"] == 4 else ""}
    {"s_lshr_b32 s101, s101, 2" if P["rot"] == 4 else ""}
    {"s_lshl_b32 s101, s101, 12" if P["rot"] == 4 else ""}
    v_mov_b32 v9, 0
    v_lshlrev_b32 v10, 4, v1        ; lane*16
    v_lshrrev_b32 v2, 3, v1
    v_and_b32 v3, 7, v1
    v_lshlrev_b32 v2, 10, v2
    v_lshl_add_u32 v11, v3, 4, v2   ; (l>>3)*1024 + (l&7)*16
    s_lshl_b32 s56, s5, 16
    s_lshl_b32 s57, s3, 13
    s_add_u32 s56, s56, s57
    s_lshl_b32 s57, s4, 7
    s_add_u32 s56, s56, s57
    v_add_u32 v28, s56, v11
    v_add_u32 v29, 0x8000, v28
    v_subrev_u32 v30, 0x1000, v28
    v_add_u32 v31, 0x7000, v28
    s_mul_i32 s57, s3, 0x1c00
    s_sub_u32 s57, 0xf000, s57
    v_add_u32 v8, s57, v28
    v_and_b32 v2, 15, v1
    s_lshl_b32 s56, s4, 6
    s_lshl_b32 s57, s3, 4
    s_add_u32 s56, s56, s57
    v_add_lshl_u32 v6, v2, s56, 3
    s_lshl_b32 s59, s3, 10          ; w*1024
    v_lshrrev_b32 v3, 4, v1
    v_mul_u32_u24 v3, {16*3584}, v3
    v_lshl_add_u32 v3, v2, 4, v3
    s_lshl_b32 s56, s64, 3
    s_lshl_b32 s57, s65, 2
    s_add_u32 s56, s56, s57
    s_mul_i32 s56, s56, 3584
    s_lshl_b32 s57, s7, 8
    s_add_u32 s56, s56, s57
    v_add_u32 v20, s56, v3
    v_add_u32 v21, 3584, v20
    v_add_u32 v22, {2*3584}, v20
    v_add_u32 v23, {3*3584}, v20
    v_lshrrev_b32 v3, 3, v1
    v_lshlrev_b32 v3, 14, v3
    v_and_b32 v5, 7, v1
    v_lshl_add_u32 v3, v5, 4, v3
    s_lshl_b32 s56, s6, 17
    s_lshl_b32 s57, s3, 12
    s_add_u32 s56, s56, s57
    v_add_u32 v24, s56, v3
    v_add_u32 v25, 1024, v24
    v_add_u32 v26, 2048, v24
    v_add_u32 v27, 3072, v24
    s_mul_i32 s62, s3, {4*1056}
    s_lshl_b32 s57, s58, 2
    s_waitcnt lgkmcnt(0)
    """)
    if not P.get("oldargs"):
        a("""
        s_mov_b64 s[12:13], s[82:83]
        s_mov_b64 s[16:17], s[84:85]
        s_mov_b64 s[28:29], s[48:49]
        s_mov_b64 s[32:33], s[50:51]
        s_mov_b64 s[48:49], s[86:87]
        s_mov_b64 s[50:51], s[90:91]
        s_mov_b64 s[36:37], s[54:55]
        s_mov_b64 s[8:9], s[80:81]
        s_mov_b64 s[20:21], s[88:89]
        s_mov_b64 s[24:25], s[94:95]
        s_mov_b64 s[44:45], s[96:97]
        s_mov_b64 s[40:41], s[98:99]
        """)
    stamp("karg")
    a(f"""
    s_load_dword s60, s[50:51], s57
    s_mov_b32 s54, s72
    s_or_b32 s55, s73, 0x80000000
    s_or_b32 s56, s2, s3
    s_cmp_lg_u32 s56, 0
    s_cbranch_scc1 L_nononce
    v_mov_b32 v2, s54
    v_mov_b32 v3, s55
    s_mov_b64 exec, 1
    buffer_store_dwordx2 v[2:3], v9, s[44:47], 0 offen sc1
    s_mov_b64 exec, -1
    L_nononce:
    """)
    if P.get("touch"):
        a(f"""
        s_cmp_lg_u32 s3, 3
        s_cbranch_scc1 L_notouch
        v_min_u32 v2, 11, v1
        v_lshlrev_b32 v2, 21, v2
        v_add_u32 v2, 0xfff80, v2
        buffer_load_dword v19, v2, s[40:43], 0 offen sc1
        buffer_load_dword v19, v9, s[36:39], 0 offen sc1
        global_load_dword v19, v9, s[52:53]
        buffer_load_dword v19, v9, s[44:47], 0 offen offset:128 sc1
        L_notouch:
        """)
    a("""
    s_cmp_ge_u32 s5, 28
    s_cbranch_scc1 L_spare
    """)
    def kv_load_items():
        o = [[f"s_lshl_b32 s56, s3, 7", f"s_add_u32 m0, s56, {KL + 8192}", "s_mov_b64 exec, 0xff",
              ("vm", f"buffer_load_dwordx4 v8, s[12:15], 0 offen {NT} lds", "kv"), "s_mov_b64 exec, -1"],
             dma_item("s59", KL, 30, "s[12:15]", 0, "kv", NT), dma_item("s59", KL+4096, 31, "s[12:15]", 0, "kv", NT),
             dma_item("s59", VL, 28, "s[16:19]", 0, "kv", NT), dma_item("s59", VL+4096, 29, "s[16:19]", 0, "kv", NT),
             ("vm", "global_load_dwordx2 v[30:31], v6, s[48:49]", "kv")]
        return o
    def late_load_items(wd):
        o = []
        if wd:
            o += [dma_item("s59", WDUL, 28, "s[32:35]", 0, "wdu", NT), dma_item("s59", WDUL+4096, 29, "s[32:35]", 0, "wdu", NT)]
        if LP5 and wd:
            return o + [["s_lshl_b32 s56, s58, 13", "s_add_u32 s56, s56, s59", ("vm", f"buffer_load_dwordx4 a[224:227], v10, s[20:23], s56 offen {NT}", "ssm")],
                        ["s_add_u32 s56, s56, 4096", ("vm", f"buffer_load_dwordx4 a[228:231], v10, s[20:23], s56 offen {NT}", "ssm")]]
        o += [["s_lshl_b32 s56, s58, 13", "s_add_u32 s56, s56, s59"] + dma_item("s59", HL+512, 10, "s[20:23]", "s56", "ssm", NT),
              ["s_add_u32 s56, s56, 4096"] + dma_item("s59", HL+4608+512, 10, "s[20:23]", "s56", "ssm", NT)]
        return o
    def kv_setup():
        a(f"""
        v_lshrrev_b32 v3, 4, v1
        v_bfe_u32 v4, v1, 2, 2
        v_lshl_add_u32 v3, v3, 4, v4
        v_lshlrev_b32 v3, 7, v3
        v_and_b32 v5, 3, v1
        v_lshl_add_u32 v3, v5, 3, v3
        s_lshl_b32 s56, s3, 5
        s_add_u32 s56, s56, {VL}
        v_add_u32 v7, s56, v3
        v_and_b32 v2, 15, v1
        v_mul_u32_u24 v2, 144, v2
        v_lshrrev_b32 v3, 4, v1
        v_sub_u32 v3, 3, v3
        v_lshl_add_u32 v2, v3, 5, v2
        s_add_u32 s56, s62, {OUTL}
        v_add_u32 v2, s56, v2
        v_lshrrev_b32 v3, 3, v1
        v_mul_u32_u24 v4, 144, v3
        v_and_b32 v5, 7, v1
        v_lshl_add_u32 v4, v5, 4, v4
        v_add_u32 v4, s56, v4
        v_lshlrev_b32 v3, 12, v3
        v_lshl_add_u32 v3, v5, 4, v3
        s_lshl_b32 s56, s4, 18
        s_lshl_b32 s57, s3, 16
        s_add_u32 s56, s56, s57
        s_sub_u32 s57, 31, s5
        s_lshl_b32 s57, s57, 7
        s_add_u32 s56, s56, s57
        s_add_u32 s98, s56, {KVT}
        s_add_u32 s99, s98, 0x8000
        s_lshl_b32 s74, s58, 7
        s_cmp_eq_u32 s3, 0
        s_cselect_b32 s74, s74, {OOR}
        ; Wd unit: LDS read address v5, store base s75
        v_lshrrev_b32 v18, 2, v1
        v_lshlrev_b32 v18, 7, v18
        v_and_b32 v5, 3, v1
        v_lshl_add_u32 v18, v5, 4, v18
        s_lshl_b32 s56, s65, 12
        s_lshl_b32 s57, s64, 6
        s_add_u32 s56, s56, s57
        s_add_u32 s56, s56, {WDUL}
        v_add_u32 v5, s56, v18
        s_mul_i32 s75, s4, 56
        s_lshl_b32 s57, s5, 1
        s_add_u32 s75, s75, s57
        s_add_u32 s75, s75, s65
        s_lshl_b32 s75, s75, 12
        s_lshl_b32 s57, s64, 11
        s_add_u32 s75, s75, s57
        s_add_u32 s75, s75, {WDP}
        """)
    KP, VP, KS = 52, 62, 96
    def kv_reads():
        return [f"ds_read_b64_tr_b16 v[{KP+2*i}:{KP+2*i+1}], v7 offset:{KL-VL + i*512}" for i in range(5)] + \
               [f"ds_read_b64_tr_b16 v[{VP+2*i}:{VP+2*i+1}], v7 offset:{i*512}" for i in range(4)]
    def kv_weights():
        return lines("""
        v_alignbit_b32 v80, v31, v31, 16
        v_alignbit_b32 v81, v30, v30, 16
        v_and_b32 v82, s61, v31
        v_bfi_b32 v83, s61, v30, v31
        v_and_b32 v84, 0xffff, v30
        """)
    def kv_valu():
        body = []
        Pp = lambda i: f"v{KP + i + 2}"
        for aa in range(8):
            body.append(f"v_dot2_f32_bf16 v{KS+2*aa}, {Pp(aa-2)}, v82, 0")
            body.append(f"v_dot2_f32_bf16 v{KS+2*aa+1}, {Pp(aa-1)}, v80, 0")
        for aa in range(8):
            body.append(f"v_dot2_f32_bf16 v{KS+2*aa}, {Pp(aa-1)}, v83, v{KS+2*aa}")
            body.append(f"v_dot2_f32_bf16 v{KS+2*aa+1}, {Pp(aa)}, v81, v{KS+2*aa+1}")
        for aa in range(8):
            body.append(f"v_dot2_f32_bf16 v{KS+2*aa}, {Pp(aa)}, v84, v{KS+2*aa}")
        for aa in range(8):
            body.append(f"v_lshlrev_b32 v{112+2*aa}, 16, v{VP+aa}")
            body.append(f"v_and_b32 v{113+2*aa}, s61, v{VP+aa}")
        for s_ in range(0, 16, 2):
            body.append(f"v_pk_mul_f32 v[{KS+s_}:{KS+s_+1}], v[{KS+s_}:{KS+s_+1}], v[{112+s_}:{113+s_}]")
        for jj in range(8):
            body.append(f"v_cvt_pk_bf16_f32 v{112+jj}, v{KS+15-2*jj}, v{KS+14-2*jj}")
        return body
    def kv_stage():
        return lines(f"""
        ds_write_b128 v2, v[112:115]
        ds_write_b128 v2, v[116:119] offset:16
        ds_read_b128 a[232:235], v4
        ds_read_b128 a[236:239], v4 offset:{8*144}
        """)
    def kv_stores():
        assert F1 == 0
        return [("vm", "buffer_store_dwordx4 a[232:235], v3, s[40:43], s98 offen sc1", "kvst"),
                ("vm", "buffer_store_dwordx4 a[236:239], v3, s[40:43], s99 offen sc1", "kvst"),
                ("vm", "buffer_load_dwordx2 v[18:19], v9, s[44:47], 0 offen sc1", "nonce")]
    def wdu_reads():
        return ["ds_read_b64_tr_b16 a[240:241], v5", "ds_read_b64_tr_b16 a[242:243], v5 offset:2048",
                "ds_read_b64_tr_b16 a[244:245], v5 offset:8", "ds_read_b64_tr_b16 a[246:247], v5 offset:2056"]
    def wdu_stores():
        return [("vm", "buffer_store_dwordx4 a[240:243], v10, s[40:43], s75 offen sc1", "wdst"),
                ("vm", "buffer_store_dwordx4 a[244:247], v10, s[40:43], s75 offen offset:1024 sc1", "wdst")]
    def kv_compute(sprinkle=()):
        vm.wait("kv")
        a("s_barrier")
        stamp("kvin")
        emit(kv_reads() + kv_weights() + ["s_waitcnt lgkmcnt(0)"])
        body = kv_valu()
        slots = {}
        if sprinkle: spread(slots, list(sprinkle), 0, len(body))
        stream(body, slots)
        emit(kv_stage())
    def zero_items():
        return lines(f"""
        v_mov_b32 v4, 0
        v_mov_b32 v5, 0
        v_mov_b32 v6, 0
        v_mov_b32 v7, 0
        v_lshrrev_b32 v3, 5, v1
        v_mul_u32_u24 v3, 4608, v3
        v_and_b32 v2, 31, v1
        v_lshl_add_u32 v3, v2, 4, v3
        v_add_u32 v3, {HL}, v3
        ds_write_b128 v3, v[4:7]
        """)
    def ssm_write_items():
        return [f"s_add_u32 s56, s59, {HL+512}", "v_add_u32 v2, s56, v10", ("wait", "ssm"),
                "ds_write_b128 v2, a[224:227]", "ds_write_b128 v2, a[228:231] offset:4608"]
    def poll1_items():
        return lines(f"""
        s_lshl_b32 s56, s4, 12
        s_lshl_b32 s57, s69, 5
        s_mul_i32 s63, s3, 7
        s_add_u32 s57, s57, s63
        v_and_b32 v3, 7, v1
        {"s_add_u32 s56, s56, s59" if P["split1"] else ""}
        v_lshl_add_u32 v2, {"v3" if P["split1"] else "v1"}, 7, s56
        v_min_u32 v3, 6, v3
        v_cmp_gt_u32 vcc, 32, v1
        v_add_lshl_u32 v3, v3, s57, 7
        s_nop 0
        v_cndmask_b32 v8, v3, v2, vcc
        """) + [poll_issue(8, 6, "poll1")]
    def u_load_items():
        return lines(f"""
        s_lshl_b32 s56, s58, 13
        s_lshl_b32 s57, s3, 11
        s_add_u32 s56, s56, s57
        s_add_u32 s63, s56, {KVT}
        """) + [("vm", "buffer_load_dwordx4 v[20:23], v10, s[40:43], s63 offen sc1", "u"),
                ("vm", "buffer_load_dword v24, v10, s[40:43], s63 offen offset:16 sc1", "u"),
                ("vm", "buffer_load_dwordx4 v[28:31], v10, s[40:43], s63 offen offset:1024 sc1", "u"),
                ("vm", "buffer_load_dword v25, v10, s[40:43], s63 offen offset:1040 sc1", "u")]
    def wd_base_items():
        return lines(f"""
        s_mul_i32 s71, s69, 56
        s_mul_i32 s56, s3, 14
        s_add_u32 s71, s71, s56
        s_lshl_b32 s71, s71, 12
        s_add_u32 s100, s71, {WDP}
        """)
    def u_write_items():
        return lines(f"""
        s_mul_i32 s56, s65, 8320
        s_lshl_b32 s57, s64, 11
        s_add_u32 s57, s57, s56
        s_add_u32 s57, s57, {UL}
        v_add_u32 v2, s57, v10
        v_bfe_u32 v3, v1, 4, 1
        v_mul_u32_u24 v3, 4160, v3
        v_and_b32 v4, 15, v1
        v_lshl_add_u32 v3, v4, 2, v3
        s_add_u32 s57, s56, {UL+4096}
        v_add_u32 v3, s57, v3
        v_and_b32 v6, 127, v0
        v_cmp_eq_u32 vcc, 127, v6
        ds_write_b32 v3, v9
        """) + [("wait", "u")] + lines(f"""
        ds_write_b128 v2, v[20:23]
        ds_write_b128 v2, v[28:31] offset:1024
        v_cndmask_b32 v25, v25, v9, vcc
        v_alignbit_b32 v4, v21, v20, 16
        v_alignbit_b32 v5, v22, v21, 16
        v_alignbit_b32 v6, v23, v22, 16
        v_alignbit_b32 v7, v24, v23, 16
        ds_write_b128 v2, v[4:7] offset:4160
        v_alignbit_b32 v20, v29, v28, 16
        v_alignbit_b32 v21, v30, v29, 16
        v_alignbit_b32 v22, v31, v30, 16
        v_alignbit_b32 v23, v25, v31, 16
        ds_write_b128 v2, v[20:23] offset:{4160+1024}
        """)
    def conv_addr_items():
        return lines(f"""
        v_and_b32 v4, 15, v1
        v_and_b32 v7, 1, v1
        v_xor_b32 v7, 1, v7
        v_mul_u32_u24 v7, 4160, v7
        v_sub_u32 v5, 15, v4
        v_lshrrev_b32 v5, 1, v5
        v_lshl_add_u32 v7, v5, 2, v7
        v_lshrrev_b32 v5, 4, v1
        v_lshl_add_u32 v7, v5, 4, v7
        s_mul_i32 s56, s65, 8320
        s_lshl_b32 s57, s64, 8
        s_add_u32 s56, s57, s56
        s_add_u32 s56, s56, {UL}
        v_add_u32 v24, s56, v7
        v_add_u32 v25, 1024, v24
        v_add_u32 v26, 2048, v24
        v_add_u32 v27, 3072, v24
        v_lshlrev_b32 v7, 5, v4
        v_lshl_add_u32 v7, v5, 4, v7
        s_mul_i32 s56, s65, 4608
        s_add_u32 s56, s56, s57
        s_add_u32 s56, s56, {HL+32}
        v_add_u32 v28, s56, v7
        """)
    def set71(i):
        if not P["rot"]: return [f"s_add_u32 s71, s100, {i*4096}"]
        if P["rot"] == 4:
            return [[f"s_add_u32 s95, s101, {i*4096}", f"s_cmp_ge_u32 s95, {14*4096}", f"s_cselect_b32 s71, {14*4096}, 0", "s_sub_u32 s95, s95, s71", "s_add_u32 s71, s100, s95"]]
        m = 3 if i < 12 else 1
        return [f"s_add_u32 s95, s101, {i & m}", f"s_and_b32 s95, s95, {m}", f"s_add_u32 s95, s95, {i & ~m}", "s_lshl_b32 s95, s95, 12", "s_add_u32 s71, s100, s95"]
    wd_state = [0]
    def wd_item():
        def f():
            n = wd_state[0]
            if n % 4 == 0: emit(set71(n // 4))
            vm.issue(f"buffer_load_dwordx4 a[{4*n}:{4*n+3}], v10, s[40:43], s71 offen offset:{(n % 4)*1024} sc1", "wd")
            wd_state[0] += 1
        return f
    CF = 32
    def creg(fs, isB, k): return CF + fs*64 + 8*k + 4*isB
    def conv_reads(bb, fs, ks):
        out = []
        for k in ks:
            ap = 7 - k
            d = creg(fs, 0, k); o = 128*(ap & 1) + 16*bb
            out.append(f"ds_read2_b32 v[{d}:{d+1}], v{24 + (ap >> 1)} offset0:{o} offset1:{o+1}")
            out.append(f"ds_read2_b32 v[{d+2}:{d+3}], v{24 + (ap >> 1)} offset0:{o+2} offset1:{o+3}")
            d = creg(fs, 1, k)
            out.append(f"ds_read_b128 v[{d}:{d+3}], v28 offset:{64*bb + 512*k}")
        return out
    conv_order = sorted([(al, m) for al in range(8) for m in range(8-al)], key=lambda t: (max(t), t))
    def conv_mfmas(fs, first):
        out = []; seen = set()
        for al, m in conv_order:
            n = al + m; acc = 224 + 4*n
            c = "0" if (first and n not in seen) else f"a[{acc}:{acc+3}]"
            seen.add(n)
            A = creg(fs, 0, al); B = creg(fs, 1, m)
            out.append(f"v_mfma_f32_16x16x32_bf16 a[{acc}:{acc+3}], v[{A}:{A+3}], v[{B}:{B+3}], {c}")
        return out

    def dma_setup(c): return [f"s_mov_b32 s66, {c*64*3584}", f"s_movk_i32 s67, {c*128}"]
    def dma_pieces(c):
        st = c % 3; out = []
        for q in range(4):
            out.append((f"s_add_u32 m0, s62, {st*STAGE + X_OFF + q*1056}", f"buffer_load_dwordx4 v{24+q}, s[8:11], s67 offen lds"))
            out.append((f"s_add_u32 m0, s62, {st*STAGE + WG_OFF + q*1056}", f"buffer_load_dwordx4 v{20+q}, s[24:27], s66 offen lds"))
            out.append((f"s_add_u32 m0, s62, {st*STAGE + WU_OFF + q*1056}", f"buffer_load_dwordx4 v{20+q}, s[28:31], s66 offen lds"))
        return out
    NCH = P.get("share", 0)
    if NCH:
        a(f"""
        s_cmp_eq_u32 s3, 1
        s_cselect_b32 s96, s28, s24
        s_cselect_b32 s97, s29, s25
        s_mov_b32 s98, {512*1792*2}
        s_mov_b32 s99, 0x20000
        v_min_u32 v2, {8*NCH-1}, v1
        v_lshrrev_b32 v3, 3, v2
        v_bfe_u32 v4, v2, 1, 2
        v_lshl_add_u32 v3, v3, 6, v4
        v_mul_u32_u24 v3, 3584, v3
        v_and_b32 v4, 1, v2
        v_lshl_add_u32 v3, v4, 7, v3
        s_mul_i32 s56, s6, {4*3584}
        s_lshl_b32 s57, s7, 8
        s_add_u32 s56, s56, s57
        s_cmp_lt_u32 s3, 2
        s_cbranch_scc1 L_sh_go
        s_mov_b32 s96, s8
        s_mov_b32 s97, s9
        s_cmp_eq_u32 s3, 2
        s_cselect_b32 s98, 0x200000, 0
        v_min_u32 v2, {10*NCH-1}, v1
        v_mul_u32_u24 v3, 6554, v2
        v_lshrrev_b32 v3, 16, v3
        v_mul_u32_u24 v4, 10, v3
        v_sub_u32 v4, v2, v4
        s_mul_i32 s57, s7, 10
        v_add_u32 v4, s57, v4
        v_min_u32 v4, 127, v4
        v_lshlrev_b32 v4, 10, v4
        v_lshl_add_u32 v3, v3, 7, v4
        s_lshl_b32 s56, s6, 17
        L_sh_go:
        buffer_load_dword v19, v3, s[96:99], s56 offen
        """)
    emit(kv_load_items())
    if P["prebar"]: a("s_barrier")
    for l in dma_setup(0): a(l)
    LP = P.get("late_pos", 2)
    if LP == 0: emit(late_load_items(True)[:2] if P.get("ssm_late") else late_load_items(True))
    if LP in (1, 2): emit(late_load_items(True)[:2])
    for m, ld in dma_pieces(0)[:P["c0_pre"]]:
        a(m); a("s_nop 0"); vm.issue(ld, "c0")
    a(f"""
    v_bfe_u32 v3, v1, 2, 3
    v_mul_u32_u24 v3, 1056, v3
    v_lshrrev_b32 v4, 5, v1
    v_lshl_add_u32 v3, v4, 8, v3
    v_and_b32 v4, 3, v1
    v_lshl_add_u32 v3, v4, 3, v3
    s_lshl_b32 s56, s64, 7
    v_add_u32 v12, s56, v3
    v_add_u32 v13, {STAGE}, v12
    v_add_u32 v14, {2*STAGE}, v12
    v_and_b32 v3, 15, v1
    v_mul_u32_u24 v3, 1056, v3
    v_lshrrev_b32 v4, 4, v1
    v_lshl_add_u32 v3, v4, 4, v3
    s_lshl_b32 s56, s65, 9
    s_add_u32 s56, s56, {X_OFF}
    v_add_u32 v15, s56, v3
    v_add_u32 v16, {STAGE}, v15
    v_add_u32 v17, {2*STAGE}, v15
    ; h store base s72/s73, F2 flag address s68
    s_lshl_b32 s56, s6, 1
    s_add_u32 s56, s56, s65
    s_lshl_b32 s57, s7, 1
    s_add_u32 s57, s57, s64
    s_lshl_b32 s68, s56, 5
    s_add_u32 s68, s68, s57
    s_lshl_b32 s68, s68, 7
    s_add_u32 s68, s68, {F2}
    s_mul_i32 s56, s56, 28
    s_add_u32 s56, s56, s57
    s_lshl_b32 s72, s56, 13
    s_add_u32 s72, s72, {HWS}
    s_add_u32 s73, s72, 4096
    """)
    kv_setup()
    kv_compute((late_load_items(True)[:2] if LP in (3, 4) else []) + [[m, "s_nop 0", ("vm", ld, "c0")] for m, ld in dma_pieces(0)[P["c0_pre"]:]])
    if not LP5:
        vm.wait("wdu")
        a("s_barrier")
        emit(wdu_reads())
    stamp("kvend")
    if LP in (1, 3): emit(late_load_items(False))
    emit(dma_setup(1))
    C1P = P.get("c1_pre", 12)
    for m, ld in dma_pieces(1)[:C1P]: emit([m, "s_nop 0", ("vm", ld, "c1")])
    if LP in (2, 4): emit(late_load_items(False))
    a("s_waitcnt lgkmcnt(0)")
    vACC, vFR, FS = 128, 32, 48
    def frag_reads(i, ks, fs):
        st = i % 3; base = vFR + fs * FS
        R = "v"
        def rdA(mat, t):
            d = base + (mat*4+t)*4; off = mat*IMG + t*32 + ks*512
            return [f"ds_read_b64_tr_b16 {R}[{d}:{d+1}], v{12+st} offset:{off}",
                    f"ds_read_b64_tr_b16 {R}[{d+2}:{d+3}], v{12+st} offset:{off + 8*1056}"]
        def rdB(u):
            d = base + 32 + u*4
            return [f"ds_read_b128 {R}[{d}:{d+3}], v{15+st} offset:{u*128 + ks*64}"]
        out = rdA(0, 0) + rdB(0) + rdB(1) + rdB(2) + rdB(3)
        for t in range(4):
            for mat in range(2):
                if (mat, t) != (0, 0): out += rdA(mat, t)
        return out
    def mfmas(fs, step):
        base = vFR + fs * FS; out = []; first = step == 0
        R = "v"
        for t in range(4):
            for mat in range(2):
                for u in range(4):
                    acc = vACC + ((mat*4+t)*4 + u)*4
                    A = base + (mat*4+t)*4; B = base + 32 + u*4
                    c = "0" if first else f"v[{acc}:{acc+3}]"
                    out.append(f"v_mfma_f32_16x16x32_bf16 v[{acc}:{acc+3}], {R}[{A}:{A+3}], {R}[{B}:{B+3}], {c}")
        return out
    def h_epi_items(tp):
        out = []
        for u in range(4):
            d = vACC + ((4+2*tp)*4 + u)*4
            for tt in range(2):
                t = tp*2 + tt
                g = vACC + (t*4 + u)*4; up = vACC + ((4+t)*4 + u)*4
                for rr in range(4): out.append(f"v_mul_f32 v{g+rr}, v{g+rr}, v{up+rr}")
            for tt in range(2):
                g = vACC + ((tp*2+tt)*4 + u)*4
                out.append(f"v_cvt_pk_bf16_f32 v{d+2*tt}, v{g}, v{g+1}")
                out.append(f"v_cvt_pk_bf16_f32 v{d+2*tt+1}, v{g+2}, v{g+3}")
            out.append(("vm", f"buffer_store_dwordx4 v[{d}:{d+3}], v10, s[40:43], s{72+tp} offen offset:{u*1024} sc1", "hst"))
        return out
    HP = P.get("hpos")
    def h_valu(tp): return [x for x in h_epi_items(tp) if isinstance(x, str)]
    def h_store(k): return [x for x in h_epi_items(k >> 2) if not isinstance(x, str)][k & 3]
    vm.wait("c0")
    a("s_barrier")
    stamp("S0")
    for l in frag_reads(0, 0, 0): a(l)
    for step in range(16):
        i, ks = step >> 1, step & 1
        fs = step & 1
        nxt = []
        if ks == 0: nxt = frag_reads(i, 1, fs ^ 1)
        elif i < 7: nxt = frag_reads(i+1, 0, fs ^ 1)
        dm = []
        def add(c, sel, setup):
            for k, (m, ld) in enumerate(sel):
                dm.append((dma_setup(c) if (setup and k == 0) else [], m, ld, f"c{c}"))
        a("s_waitcnt lgkmcnt(0)")
        SM = P["st_mode"]
        if SM == 2:
            sched = P["sched"]
            allp = [(1, k) for k in range(C1P, 12)] + [(c, k) for c in range(2, 8) for k in range(12)]
            st0 = sum(sched[:step])
            for c, k in (allp[st0:st0 + sched[step]] if step < len(sched) else []):
                m, ld = dma_pieces(c)[k]
                assert (c < 3 or step >= 2*(c-3) + 1) and step < 2*c - 1, (step, c)
                dm.append((dma_setup(c) if k == 0 else [], m, ld, f"c{c}"))
            assert sum(sched) == 84 - C1P
        elif SM == 0 and step == 0: add(2, dma_pieces(2)[:6], True)
        elif SM == 0 and step == 1: add(2, dma_pieces(2)[6:], False); add(3, dma_pieces(3)[:2], True)
        elif SM == 0 and step == 2: add(3, dma_pieces(3)[2:10], False)
        elif SM == 0 and step == 3: add(3, dma_pieces(3)[10:], False); add(4, dma_pieces(4)[:6], True)
        elif SM == 1 and step == 0: add(2, dma_pieces(2)[:8], True)
        elif SM == 1 and step == 1: add(2, dma_pieces(2)[8:], False)
        elif SM == 1 and step == 2: add(3, dma_pieces(3)[:8], True)
        elif SM == 1 and step == 3: add(3, dma_pieces(3)[8:], False); add(4, dma_pieces(4)[:4], True)
        elif SM == 1 and step == 4: add(4, dma_pieces(4)[4:], False)
        else:
            if ks == 0 and i + 2 < 8: add(i + 2, dma_pieces(i + 2)[6:], False)
            if ks == 1 and i + 3 < 8: add(i + 3, dma_pieces(i + 3)[:6], True)
        sync = []
        if ks == 1:
            if i < 7: sync.append(("wait", f"c{i+1}"))
            if step == P["f1_ks"]: sync.append(("wait", "nonce"))
            if P["split1"] and step == P.get("chk_sync", P["chk_ks"] - 1): sync.append(poll_check(8, 6, "poll1"))
            sync.append("s_barrier")
        so = P["s1_slot"] if step == 1 else 0
        if ks == 1 and step < 15 and P.get("late"): so = P["late"]
        if so == 0: emit(sync)
        stamp(f"st{step}")
        mf = mfmas(fs, step)
        slots = {}
        if so: put(slots, so - 1, sync)
        if so and nxt: spread(slots, nxt, so, 24)
        else:
            for k, rd in enumerate(nxt): put(slots, k, [rd])
        nd = len(dm)
        first = 12 if (step == 0 and SM == 0) else so + 2
        lastp = 16 if (step == 1 and SM == 1) else 29
        for k, (su, m, ld, tag) in enumerate(dm):
            p = first + (k * (lastp - first)) // nd
            put(slots, p, su + [m]); slots.setdefault(p+1, []).insert(0, ("vm", ld, tag))
        if step == 0 and SM == 0: spread(slots, wdu_stores() + kv_stores(), 0, 10)
        if step == 1 and SM == 1: spread(slots, wdu_stores() + kv_stores(), 18, 32)
        if SM == 2 and not P.get("st_spread") and step == P["st_step"]: put(slots, 31, wdu_stores() + kv_stores())
        if P.get("st_spread"):
            for k, (ss, sl) in enumerate(P["st_spread"]):
                if ss == step: put(slots, sl, [(wdu_stores() + kv_stores())[k]])
        if step == P["f1_ks"]:
            assert step & 1
            put(slots, max(so, 1), [get_nonce] + flag_items("s74", "f1"))
        if step == 4 and not LP5: spread(slots, zero_items(), 20, 32)
        if LP5:
            if step == 0: put(slots, 0, late_load_items(True)[:2]); put(slots, 1, late_load_items(True)[2:])
            if step == 3: spread(slots, wdu_reads(), 25, 30)
            if step == 6: spread(slots, zero_items() + ssm_write_items(), 18, 32)
        if step == 10 and P.get("ssm_late"): put(slots, 31, [late_load_items(False)])
        if step == P["poll_ks"] - 1:
            spread(slots, poll1_items()[:-1], 20, 32)
        if step == P["poll_ks"]:
            put(slots, P.get("poll_slot", 0), poll1_items()[-1:])
        WS_ = P.get("wd_sched")
        if WS_:
            cs = P["chk_sync"]
            if step == cs: put(slots, so, wd_base_items())
            if step >= cs and WS_[step]:
                spread(slots, [wd_item() for _ in range(WS_[step])], (so + 3 if step == cs else 3), 32 if step < 15 else 18)
            if step == P["chk_ks"]:
                put(slots, 1, u_load_items()[:4])
                spread(slots, u_load_items()[4:], 2, 10)
        else:
            if step == P["chk_ks"]:
                if not P["split1"]: put(slots, 0, [poll_check(8, 6, "poll1")])
                put(slots, 1, wd_base_items() + u_load_items()[:4])
                spread(slots, u_load_items()[4:], 2, 10)
                spread(slots, [wd_item() for _ in range(P["wd_ks"] - 3)], 12, 32)
            if step > P["chk_ks"]:
                spread(slots, [wd_item() for _ in range(P["wd_ks"] if step < 15 else P.get("wd15", 4))], 2, 32 if (step < 15 or HP) else 18)
        if step == 14:
            it = u_write_items()
            spread(slots, it[:14], 2, 14); spread(slots, it[14:], 16, 24); spread(slots, conv_addr_items(), 24, 32)
        if step == 15:
            spread(slots, conv_reads(0, 0, range(6)), 0, 18)
            spread(slots, h_valu(0) if HP else h_epi_items(0), 18, 32)
            if HP:
                for k, p in enumerate(HP):
                    if p < 32: put(slots, p, [h_store(k)])
        stream(mf, slots)
    stamp("g1end")
    wd_join = wd_state[0]
    a("L_conv:")
    for l in conv_reads(0, 0, (6, 7)): a(l)
    HD = P["hdepth"]
    HR = [32 + 16*i for i in range(HD + 1)]
    def hload_items(i):
        out = []
        for sg in range(4):
            d = HR[i % (HD+1)] + 4*sg
            out.append(("vm", f"buffer_load_dwordx4 v[{d}:{d+3}], v{12+sg}, s[40:43], s71 offen sc1", f"h{i}"))
        out[0] = set71(i) + [out[0]]
        return out
    def g2_setup_items():
        o = lines(f"""
        v_min_u32 v2, 6, v1
        s_lshl_b32 s56, s70, 5
        s_mul_i32 s57, s3, 7
        s_add_u32 s56, s56, s57
        v_add_lshl_u32 v8, v2, s56, 7
        v_add_u32 v8, {F2}, v8
        """)
        for sg in range(4):
            o += [f"s_add_u32 s56, s3, {sg}", "s_and_b32 s56, s56, 3", "s_lshl_b32 s56, s56, 10", f"v_add_u32 v{12+sg}, s56, v10"]
        return o
    def h_base_items():
        return lines(f"""
        s_mul_i32 s71, s70, 56
        s_mul_i32 s56, s3, 14
        s_add_u32 s71, s71, s56
        s_lshl_b32 s71, s71, 12
        s_add_u32 s100, s71, {HWS}
        """)
    def conv_epi_setup_items():
        return lines(f"""
        v_lshrrev_b32 v2, 4, v1
        v_lshl_add_u32 v2, v2, 6, v10
        s_mul_i32 s56, s3, {8*1280}
        v_add_u32 v2, s56, v2
        v_and_b32 v3, 3, v1
        v_mul_u32_u24 v3, 320, v3
        v_lshrrev_b32 v4, 2, v1
        v_lshl_add_u32 v3, v4, 4, v3
        s_mul_i32 s56, s3, 2560
        v_add_u32 v3, s56, v3
        v_lshlrev_b32 v4, 3, v1
        s_lshl_b32 s56, s3, 10
        s_sub_u32 s56, {UL+4088-512}, s56
        v_sub_u32 v4, s56, v4
        s_lshl_b32 s72, s60, 16
        s_and_b32 s73, s60, 0xffff0000
        s_lshl_b32 s56, s58, 13
        s_lshl_b32 s57, s3, 11
        s_add_u32 s56, s56, s57
        s_add_u32 s63, s56, {Y2}
        s_lshl_b32 s75, s3, 8
        s_add_u32 s75, s75, s58
        s_lshl_b32 s75, s75, 7
        s_add_u32 s75, s75, {F3}
        """)
    E = 160; E2 = 112
    def uD_items():
        o = []
        for t in range(2):
            for ch in range(2):
                o.append(f"ds_read_b64 v[{E+48+(t*2+ch)*2}:{E+49+(t*2+ch)*2}], v4 offset:{ch*8320 + (1-t)*512}")
        o.append("s_waitcnt lgkmcnt(0)")
        for t in range(2):
            for ch in range(2):
                s = E + 48 + (t*2+ch)*2; d = E + 32 + (t*2+ch)*4
                o += [f"v_and_b32 v{d}, s61, v{s+1}", f"v_lshlrev_b32 v{d+1}, 16, v{s+1}", f"v_and_b32 v{d+2}, s61, v{s}", f"v_lshlrev_b32 v{d+3}, 16, v{s}"]
                o += [f"v_mul_f32 v{d+rr}, s{72+ch}, v{d+rr}" for rr in range(4)]
        return o
    def gate_load_items():
        return lines(f"""
        s_lshl_b32 s66, s70, 3
        s_add_u32 s66, s66, s69
        s_lshl_b32 s66, s66, 2
        s_add_u32 s66, s66, s3
        s_lshl_b32 s67, s66, 4
        s_add_u32 s67, s67, {GATE}
        s_lshl_b32 s66, s66, 11
        """) + [("vm", "buffer_load_dwordx4 v[168:171], v10, s[8:11], s66 offen", "gx"),
                 ("vm", "buffer_load_dwordx4 v[172:175], v10, s[8:11], s66 offen offset:1024", "gx"),
                 ("vm", "global_load_dwordx4 v[176:179], v10, s[52:53]", "gx")]
    def gate_items():
        o = [("wait", "gx"), "s_mov_b32 s66, 0x3f803f80"]
        a = lambda t: o.extend(lines(t))
        for i in range(4):
            a(f"""
            v_lshlrev_b32 v180, 16, v{176+i}
            v_and_b32 v181, s61, v{176+i}
            v_lshlrev_b32 v182, 16, v{168+i}
            v_and_b32 v183, s61, v{168+i}
            v_lshlrev_b32 v184, 16, v{172+i}
            v_and_b32 v185, s61, v{172+i}
            v_pk_mul_f32 v[182:183], v[182:183], v[180:181]
            v_pk_mul_f32 v[184:185], v[184:185], v[180:181]
            v_cvt_pk_bf16_f32 v182, v182, v183
            v_cvt_pk_bf16_f32 v184, v184, v185
            v_dot2_f32_bf16 v186, v182, s66, {'0' if i == 0 else 'v186'}
            v_dot2_f32_bf16 v187, v184, s66, {'0' if i == 0 else 'v187'}
            """)
        a("s_nop 2")
        for ctrl in ("row_shr:1 row_mask:0xf bank_mask:0xf bound_ctrl:0", "row_shr:2 row_mask:0xf bank_mask:0xf bound_ctrl:0",
                     "row_shr:4 row_mask:0xf bank_mask:0xf bound_ctrl:0", "row_shr:8 row_mask:0xf bank_mask:0xf bound_ctrl:0",
                     "row_bcast:15 row_mask:0xa bank_mask:0xf", "row_bcast:31 row_mask:0xc bank_mask:0xf"):
            a(f"v_add_f32_dpp v186, v186, v186 {ctrl}")
            a(f"v_add_f32_dpp v187, v187, v187 {ctrl}")
            a("s_nop 0")
        a(f"""
        v_cvt_pk_bf16_f32 v186, v186, v187
        s_mov_b32 s66, 0xbfb8aa3b
        v_lshlrev_b32 v180, 16, v186
        v_and_b32 v181, s61, v186
        v_mul_f32 v180, s66, v180
        v_mul_f32 v181, s66, v181
        v_exp_f32 v180, v180
        v_exp_f32 v181, v181
        s_nop 0
        v_add_f32 v180, 1.0, v180
        v_add_f32 v181, 1.0, v181
        v_rcp_f32 v180, v180
        v_rcp_f32 v181, v181
        s_nop 0
        v_cvt_pk_bf16_f32 v186, v180, v181
        v_lshlrev_b32 v180, 16, v186
        v_and_b32 v182, s61, v186
        v_sub_f32 v181, 1.0, v180
        v_sub_f32 v183, 1.0, v182
        v_cvt_pk_bf16_f32 v186, v181, v183
        v_lshlrev_b32 v181, 16, v186
        v_and_b32 v183, s61, v186
        """)
        o.append(["s_mov_b32 exec_lo, 0", "s_mov_b32 exec_hi, 0x80000000",
                  ("vm", "buffer_store_dwordx4 v[180:183], v9, s[40:43], s67 offen sc1", "yst"), "s_mov_b64 exec, -1"])
        return o
    wd_left = 56 - wd_join
    for bb in range(4):
        a("s_waitcnt lgkmcnt(6)" if bb == 0 else "s_waitcnt lgkmcnt(0)")
        stamp(f"cb{bb}")
        mf = conv_mfmas(bb & 1, bb == 0)
        slots = {}
        if bb == 0:
            spread(slots, h_valu(1) if HP else h_epi_items(1), 0, P.get("e1_end", 16))
            put(slots, 12, ["s_waitcnt lgkmcnt(0)"])
            spread(slots, conv_reads(1, 1, range(8)), 14, 34)
        elif bb < 3:
            spread(slots, conv_reads(bb+1, (bb+1) & 1, range(8)), 0, 24)
        n = P["wd_conv"][bb] if bb < 3 else 56 - wd_state[0]
        if n: spread(slots, [wd_item() for _ in range(n)], (18 if bb == 0 and not HP else 0), 36 if bb < 3 else P["p2_slot"])
        if bb == 3: put(slots, P["p2_slot"], ([poll_issue(8, 6, "poll2")] if P["p2_in"] else []) + h_base_items())
        if bb == 1: spread(slots, g2_setup_items(), 24, 36)
        if bb == 2: spread(slots, conv_epi_setup_items(), 24, 36)
        if P["gate_i"] == -2:
            if bb == 0: spread(slots, gate_load_items(), 20, 34)
            if bb == 2: spread(slots, gate_items()[:51], 2, 36)
            if bb == 3: spread(slots, gate_items()[51:], 0, 36)
        elif bb == 2: spread(slots, gate_load_items(), 4, 24)
        if bb == 3:
            it = uD_items()
            spread(slots, it[:4], 0, 4); spread(slots, it[4:], 10, 34)
        if HP:
            for k, p in enumerate(HP):
                if 32 + 36*bb <= p < 68 + 36*bb: put(slots, p - 32 - 36*bb, [h_store(k)])
        if bb == P["f2_pos"][0]: put(slots, P["f2_pos"][1], [("wait", "hst")] + flag_items("s68", "f2") + [lambda: stamp("f2")])
        stream(mf, slots)
    assert wd_state[0] == 56
    stamp("convloopend")
    if not P["p2_in"]: emit(poll_issue(8, 6, "poll2"))
    a("s_nop 6")
    for n in range(8):
        a(f"ds_write_b128 v2, a[{224+4*n}:{227+4*n}] offset:{PL + n*1280}")
    gi = gate_items()
    emit(gi[:27])
    a("s_waitcnt lgkmcnt(0)\ns_barrier")
    for t in range(2):
        for w in range(4):
            d = E2 + (t*4+w)*4
            a(f"ds_read_b128 v[{d}:{d+3}], v3 offset:{PL + w*8*1280 + t*1280}")
    emit(gi[27:51])
    for t in range(2):
        a(f"s_waitcnt lgkmcnt({4-4*t})")
        for ch in range(2):
            p0 = E2 + (t*4+2*ch)*4; p1 = p0 + 4; u = E + 32 + (t*2+ch)*4
            for rr in range(0, 4, 2): a(f"v_pk_add_f32 v[{p0+rr}:{p0+rr+1}], v[{p0+rr}:{p0+rr+1}], v[{p1+rr}:{p1+rr+1}]")
            for rr in range(0, 4, 2): a(f"v_pk_add_f32 v[{p0+rr}:{p0+rr+1}], v[{p0+rr}:{p0+rr+1}], v[{u+rr}:{u+rr+1}]")
        for rr in range(4):
            a(f"v_cvt_pk_bf16_f32 v{20+4*t+rr}, v{E2+(t*4)*4+rr}, v{E2+(t*4+2)*4+rr}")
    stamp("convdone")
    yst = [("vm", f"buffer_store_dwordx4 v[{20+4*t}:{23+4*t}], v10, s[40:43], s63 offen offset:{t*1024} sc1", "yst") for t in range(2)]
    if P["y_first"]: emit(yst)
    emit(poll_check(8, 6, "poll2"))
    stamp("hready")
    emit(hload_items(0)); emit(hload_items(1))
    if not P["y_first"]: emit(yst)
    GACC = 192
    def fin_setup_items():
        return lines(f"""
        v_and_b32 v2, 15, v1
        s_lshl_b32 s56, s70, 6
        s_lshl_b32 s57, s3, 4
        s_add_u32 s56, s56, s57
        v_add_u32 v2, s56, v2
        v_lshrrev_b32 v3, 4, v1
        v_lshlrev_b32 v4, 10, v2
        v_lshl_add_u32 v4, v3, 4, v4
        s_lshl_b32 s56, s69, 7
        v_add_u32 v16, s56, v4
        v_lshlrev_b32 v5, 15, v3
        v_lshl_add_u32 v17, v2, 2, v5
        v_lshlrev_b32 v11, 3, v2
        v_add_u32 v11, {GATE}, v11
        s_lshr_b32 s56, s70, 3
        s_lshl_b32 s56, s56, 8
        s_lshl_b32 s57, s69, 5
        s_add_u32 s56, s56, s57
        s_lshl_b32 s56, s56, 7
        s_add_u32 s56, s56, {F3}
        {"s_add_u32 s56, s56, s59" if P["split3"] else ""}
        v_and_b32 v2, {7 if P["split3"] else 63}, v1
        v_lshl_add_u32 v2, v2, 7, s56
        s_lshl_b32 s57, s70, 2
        s_add_u32 s57, s57, s3
        s_lshl_b32 s57, s57, 8
        s_add_u32 s57, s57, {F3}
        v_and_b32 v3, 3, v1
        v_bfe_u32 v4, v1, 2, 1
        v_lshlrev_b32 v3, 15, v3
        v_lshl_add_u32 v3, v4, 7, v3
        v_add_u32 v3, s57, v3
        v_cmp_gt_u32 vcc, 32, v1
        s_lshl_b32 s74, s69, 18
        s_add_u32 s74, s74, {Y2}
        v_cndmask_b32 v8, v3, v2, vcc
        """)
    def fin_load_items():
        o = [("vm", "buffer_load_dwordx2 v[28:29], v11, s[40:43], 0 offen sc1", "fin")]
        for hh in range(2):
            for i in range(4):
                o.append([f"s_add_u32 s57, s74, {(16*hh + i)*8192}",
                          ("vm", f"buffer_load_dword v{160+4*hh+i}, v17, s[40:43], s57 offen sc1", "fin")])
        return o
    body = gi[51:] + fin_setup_items()
    slots = {}
    spread(slots, sum([hload_items(i) for i in range(2, P["h_pre"])], []), 20, len(body))
    stream(body, slots)
    nxt_h = [P["h_pre"]]
    emit([("wait", "yst")] + flag_items("s75", "f3")) if P["f3_i"] < 0 else None
    for i in range(14):
        vm.wait(f"h{i}")
        stamp(f"gi{i}")
        mf = []
        order = [(dtile, sg) for dtile in range(4) for sg in range(4)]
        if i == 13: order = [(dtile, sg) for sg in (1, 2, 3, 0) for dtile in range(4)]
        for dtile, sg in order:
                acc = GACC + (sg*4 + dtile)*4
                A = (i*4 + dtile)*4; B = HR[i % (HD+1)] + 4*sg
                c = "0" if i == 0 else f"v[{acc}:{acc+3}]"
                mf.append(f"v_mfma_f32_16x16x32_bf16 v[{acc}:{acc+3}], a[{A}:{A+3}], v[{B}:{B+3}], {c}")
        slots = {}
        hl = []
        while nxt_h[0] < 14 and nxt_h[0] <= i + HD and len(hl) < 4*P["h_rate"]:
            hl += hload_items(nxt_h[0]); nxt_h[0] += 1
        if hl: spread(slots, hl, 0, 16)
        if i == P["f3_i"]: put(slots, 0, [("wait", "yst")] + flag_items("s75", "f3"))
        if i == P["q_i"]:
            put(slots, 2, [("vm", "buffer_load_dwordx4 v[20:23], v16, s[8:11], 0 offen", "q")])
            put(slots, 10, [("vm", "buffer_load_dwordx4 v[24:27], v16, s[8:11], 0 offen offset:64", "q")])
        if i == P["f3poll_i"]: put(slots, 0, [poll_issue(8, 6, "poll3")])
        if i == P["f3chk_i"]:
            put(slots, 2, [poll_check(8, 6, "poll3")] + (["s_barrier"] if P["split3"] else []))
            spread(slots, fin_load_items(), 3, 16)
        if i == 12:
            for sg in range(1, 4):
                put(slots, 4*sg-4, [f"s_add_u32 s56, s3, {sg}", "s_and_b32 s56, s56, 3", f"s_mul_i32 s56, s56, {12*1024}",
                                    f"s_add_u32 s56, s56, {XL + (sg-1)*4096}", f"v_add_u32 v{12+sg}, s56, v10"])
            put(slots, 12, [f"s_mul_i32 s56, s3, {12*1024}", f"s_add_u32 s56, s56, {XL}", "v_add_u32 v12, s56, v10"])
        xw = [f"ds_write_b128 v{12+sg}, v[{GACC+(sg*4+dtile)*4}:{GACC+(sg*4+dtile)*4+3}] offset:{dtile*1024}" for sg in (1, 2, 3) for dtile in range(4)]
        if i == 13:
            for k in range(7): put(slots, 9 + k, [xw[k]])
        stream(mf, slots)
    stamp("g2end")
    if P["f3chk_i"] >= 14:
        emit(poll_check(8, 6, "poll3"))
        if P["split3"]: a("s_barrier")
        emit(fin_load_items())
    emit(xw[7:])
    vm.wait("fin"); vm.wait("q")
    for hh in range(2):
        for i in range(4):
            q = 20 + 4*hh + i; y = 160 + 4*hh + i; d = 128 + 8*hh + 2*i
            a(f"""
            v_lshlrev_b32 v{d}, 16, v{q}
            v_and_b32 v{d+1}, s61, v{q}
            v_lshlrev_b32 v52, 16, v{y}
            v_and_b32 v53, s61, v{y}
            v_pk_mul_f32 v[{d}:{d+1}], v[{d}:{d+1}], v[52:53]
            v_pk_mul_f32 v[{d}:{d+1}], v[{d}:{d+1}], v[28:29] op_sel_hi:[1,0]
            """)
        if hh == 0:
            a("s_waitcnt lgkmcnt(0)\ns_barrier")
            for k in (0, 4, 8, 1, 5, 9, 2, 6, 10, 3, 7, 11):
                a(f"ds_read_b128 v[{64+4*k}:{67+4*k}], v12 offset:{k*1024}")
    for hh in range(2):
        a(f"s_waitcnt lgkmcnt({6-6*hh})")
        for sgi in range(3):
            for e in range(8*hh, 8*hh+8, 2):
                a(f"v_pk_add_f32 v[{GACC+e}:{GACC+e+1}], v[{GACC+e}:{GACC+e+1}], v[{64+16*sgi+e}:{65+16*sgi+e}]")
        for i in range(4):
            b = GACC + 8*hh + 2*i; d = 128 + 8*hh + 2*i
            a(f"v_pk_fma_f32 v[{d}:{d+1}], v[{b}:{b+1}], v[28:29], v[{d}:{d+1}] op_sel:[0,1,0] op_sel_hi:[1,1,1]")
        for i in range(4):
            d = 128 + 8*hh + 2*i
            a(f"v_cvt_pk_bf16_f32 v{56+4*hh+i}, v{d}, v{d+1}")
        vm.issue(f"buffer_store_dwordx4 v[{56+4*hh}:{59+4*hh}], v16, s[36:39], 0 offen offset:{64*hh} {P['outflags']}", "out")
    if stamps:
        vm.wait_all()
        stamp("final")
        a(f"""
        s_waitcnt lgkmcnt(0)
        s_lshl_b32 s56, s2, 2
        s_add_u32 s56, s56, s3
        s_lshl_b32 s56, s56, 7
        s_add_u32 s56, s56, {STAMP}
        v_mov_b32 v1, s56
        s_mov_b64 exec, 1
        """)
        for i in range(18):
            a(f"v_mov_b32 v2, s{76+i}")
            a(f"buffer_store_dword v2, v1, s[40:43], 0 offen offset:{4*i}")
        if P.get("dbg"):
            for i in range(len(names)):
                a(f"s_sub_u32 s56, s{76+2*i}, s54")
                a(f"s_add_u32 s56, s56, 1000")
                a(f"v_mov_b32 v2, s56")
                a(f"buffer_atomic_umax v2, v9, s[44:47], 0 offen offset:{8+4*i}")
    if P.get("hold"):
        a(f"""
        L_hold:
        s_memrealtime s[56:57]
        s_waitcnt lgkmcnt(0)
        s_sub_u32 s56, s56, s54
        s_cmp_lt_i32 s56, {P["hold"]}
        s_cbranch_scc1 L_hold
        """)
    a("L_end:\ns_endpgm")

    a("L_spare:")
    vm.ops = []
    a(f"""
    s_sub_u32 s6, s5, 28            ; p
    s_lshl_b32 s7, s4, 2
    s_add_u32 s7, s7, s6
    """)
    if P["codepf"]:
        a(f"""
        s_getpc_b64 s[96:97]
        L_pc:
        s_sub_u32 s96, s96, L_pc-{KNAME}
        s_subb_u32 s97, s97, 0
        v_lshlrev_b32 v2, 7, v0
        v_min_u32 v2, L_code_end-{KNAME}-4, v2
        global_load_dword v39, v2, s[96:97]
        """)
    def pf_item(c): return [("vm", f"global_load_dword v{40+c}, v[12:13], off", "pf"), "v_lshl_add_u64 v[12:13], v[12:13], 0, v[14:15]"]
    a(f"""
    s_lshl_b32 s56, s7, 2
    s_add_u32 s56, s56, s3
    s_cmp_lt_u32 s56, 64
    s_cselect_b32 s96, s24, s28
    s_cselect_b32 s97, s25, s29
    s_and_b32 s57, s56, 63
    s_add_u32 s57, s57, {64*P["pf_from"]}
    s_mul_i32 s57, s57, 3584
    s_add_u32 s96, s96, s57
    s_addc_u32 s97, s97, 0
    s_lshl_b32 s57, s56, 14
    s_add_u32 s57, s57, {128*P["pf_from"]}
    s_add_u32 s98, s8, s57
    s_addc_u32 s99, s9, 0
    v_cmp_gt_u32 vcc, 32, v1
    v_min_u32 v2, 27, v1
    v_lshlrev_b32 v2, 7, v2
    v_and_b32 v3, 15, v1
    v_lshlrev_b32 v3, 10, v3
    v_cndmask_b32 v2, v3, v2, vcc
    v_mov_b32 v3, 0
    v_mov_b32 v4, s96
    v_mov_b32 v5, s98
    v_cndmask_b32 v12, v5, v4, vcc
    v_mov_b32 v4, s97
    v_mov_b32 v5, s99
    v_cndmask_b32 v13, v5, v4, vcc
    v_lshl_add_u64 v[12:13], v[12:13], 0, v[2:3]
    v_mov_b32 v4, {64*3584}
    v_mov_b32 v5, 128
    v_cndmask_b32 v14, v5, v4, vcc
    v_mov_b32 v15, 0
    """)
    pfs = {c: (pf_item(c) if P["pf"] else []) for c in range(P["pf_from"], 8)}
    if P.get("sp_order", 0) == 0:
        for c in range(P["pf_from"], 5): emit(pfs[c])
        emit(kv_load_items() + late_load_items(False))
        for c in range(5, 8): emit(pfs[c])
        kv_setup()
        kv_compute()
        a("s_waitcnt lgkmcnt(0)")
        emit(kv_stores())
    else:
        f = P["pf_from"]
        emit(pfs[f])
        emit(kv_load_items())
        for c in range(f + 1, min(f + 3, 8)): emit(pfs[c])
        kv_setup()
        kv_compute()
        a("s_waitcnt lgkmcnt(0)")
        emit(kv_stores())
        for c in range(f + 3, 8): emit(pfs[c])
        emit(late_load_items(False))
    stamp("kvend")
    emit(zero_items())
    vm.wait("nonce")
    get_nonce()
    a("s_barrier")
    emit(flag_items("s74", "f1"))
    stamp("S0")
    emit(poll1_items())
    emit(poll_check(8, 6, "poll1", sleep=24))
    if P["split1"]: a("s_barrier")
    emit(u_load_items() + wd_base_items())
    emit(u_write_items() + conv_addr_items())
    a("s_waitcnt lgkmcnt(0)\ns_barrier")
    wd_state[0] = 0
    for _ in range(wd_join): emit(wd_item())
    for l in conv_reads(0, 0, range(6)): a(l)
    a(f"s_mov_b32 s72, {OOR}\ns_mov_b32 s73, {OOR}\ns_mov_b32 s68, {OOR}")
    stamp("g1end")
    a("s_branch L_conv")
    a("L_code_end:")
    txt = wrap(a.text(), 256, 256, 160*1024, vgpr=512, sgpr=102, accum=256, header=HEADER)
    return txt, names

if __name__ == "__main__":
    import json
    V = json.loads(sys.argv[1]) if len(sys.argv) > 1 else {"k21": {}}
    for n, p in V.items():
        p = {k: (tuple(v) if isinstance(v, list) else v) for k, v in p.items()}
        t, _ = gen(False, p); open(f"dev/{n}.s", "w").write(t)
        t, names = gen(True, p); open(f"dev/{n}_st.s", "w").write(t.replace("; @launch", "; stamps: " + " ".join(names) + "\n; @launch", 1))
    print(names)
```
